```python
import torch

def _softmax(x, axis=-1):
    return torch.softmax(x, dim=axis)
def _gelu(x):
    return torch.nn.functional.gelu(x, approximate="tanh")
def _silu(x):
    return torch.nn.functional.silu(x)
def _sigmoid(x):
    return torch.sigmoid(x)
def _layernorm(x, axis=-1, eps=1e-5):
    m = x.mean(dim=axis, keepdim=True)
    v = x.var(dim=axis, keepdim=True, unbiased=False)
    return (x - m) / torch.sqrt(v + eps)
def _scatter_add(tgt, idx, src, axis=0):
    return tgt.clone().index_add_(axis, idx, src)
def _segment_sum(src, seg, n):
    out = torch.zeros((n,) + src.shape[1:], dtype=src.dtype)
    return out.index_add_(0, seg, src)
def _pad(x, pw):
    flat = tuple(v for pair in reversed(pw) for v in pair)
    return torch.nn.functional.pad(x, flat)

kernel_name = 'gated_mix__grouped_kv_mqa__dense_activation_silu__prompt'

def setup_inputs():

    _w = (lambda a: (lambda t: t.to(torch.bfloat16) if t.is_floating_point() else t)(torch.as_tensor(a)))
    def _A_setup():
        B, S, D, H = 1, 2048, 512, 32
        Dh = D // H
        return {
            "x": _w((lambda *s: torch.randn(*s, dtype=torch.bfloat16) * 0.05)(B, S, D)),
            "wq": _w((lambda *s: torch.randn(*s, dtype=torch.bfloat16) * 0.8)(D, H * Dh)),
            "wk": _w((lambda *s: torch.randn(*s, dtype=torch.bfloat16) * 0.8)(D, Dh)),
            "wv": _w((lambda *s: torch.randn(*s, dtype=torch.bfloat16) * 0.05)(D, Dh)),
            "wo": _w((lambda *s: torch.randn(*s, dtype=torch.bfloat16) * 0.05)(H * Dh, D)),
        }
    _A_in = _A_setup()

    def _B_setup():
        B, S, D, F = 1, 2048, 512, 1792
        return {
            "x": _w((lambda *s: torch.randn(*s, dtype=torch.bfloat16) * 0.05)(B, S, D)),
            "w1": _w((lambda *s: torch.randn(*s, dtype=torch.bfloat16) * 3.2)(D, F) * (D ** -0.5)),
            "w2": _w((lambda *s: torch.randn(*s, dtype=torch.bfloat16) * 0.1)(F, D) * (F ** -0.5)),
        }
    _B_in = _B_setup()

    return {
        "A_x": _A_in["x"],
        "A_wq": _A_in["wq"],
        "A_wk": _A_in["wk"],
        "A_wv": _A_in["wv"],
        "A_wo": _A_in["wo"],
        "B_x": _B_in["x"],
        "B_w1": _B_in["w1"],
        "B_w2": _B_in["w2"],
        "gate_w": _w((lambda *s: torch.randn(*s, dtype=torch.bfloat16) * 0.05)(512) * 16.0),
    }

def reference(A_x, A_wq, A_wk, A_wv, A_wo, B_x, B_w1, B_w2, gate_w):
    def _A_ref(x, wq, wk, wv, wo):
        B, S, D = x.shape
        H = 32
        Dh = D // H
        q = (lambda x, *d: x.permute(*d))((x @ wq).reshape(B, S, H, Dh), 0, 2, 1, 3)
        k = x @ wk
        v = x @ wv
        scores = torch.einsum("bhqd,bkd->bhqk", q, k) * (Dh ** -0.5)
        p = _softmax(scores, axis=-1)
        o = torch.einsum("bhqk,bkd->bhqd", p, v)
        return (lambda x, *d: x.permute(*d))(o, 0, 2, 1, 3).reshape(B, S, H * Dh) @ wo

    def _B_ref(x, w1, w2):
        h = torch.einsum("bsd,df->bsf", x, w1)
        h = _silu(h)
        out = torch.einsum("bsf,fd->bsd", h, w2)
        return out

    x = A_x
    g = _sigmoid((x * gate_w).sum(-1, keepdims=True))
    a = _A_ref(x, A_wq, A_wk, A_wv, A_wo)
    b = _B_ref(x, B_w1, B_w2)
    return g * a + (1 - g) * b
```

```python
import re

REG_RE = re.compile(r'(?<![\w.])([vsa])(\d+)(?![\w\[])|(?<![\w.])([vsa])\[(\d+):(\d+)\]|\b(vcc|exec|m0|scc)\b')

def regs_of(tok):
    out = []
    for m in REG_RE.finditer(tok):
        if m.group(1):
            out.append(m.group(1) + m.group(2))
        elif m.group(3):
            out += [m.group(3) + str(i) for i in range(int(m.group(4)), int(m.group(5)) + 1)]
        else:
            out.append(m.group(6))
    return out

TRANS = ('v_exp_', 'v_log_', 'v_rcp_', 'v_rsq_', 'v_sqrt_', 'v_sin_', 'v_cos_')

class Ins:
    __slots__ = ('text', 'op', 'dst', 'src', 'kind', 'ops')
    def __init__(self, text):
        self.text = text
        t = text.split(';')[0].strip()
        self.op = t.split()[0] if t else ''
        rest = t[len(self.op):].strip()
        ops = [o.strip() for o in split_ops(rest)]
        self.ops = ops
        op = self.op
        self.kind = 'other'; self.dst = []; self.src = []
        if op.endswith(':') or op.startswith('.') or op == '':
            self.kind = 'label'
        elif op.startswith('v_mfma'):
            self.kind = 'mfma'
            self.dst = regs_of(ops[0]); self.src = regs_of(ops[1]) + regs_of(ops[2]) + regs_of(ops[3])
        elif op.startswith('v_cmp'):
            self.kind = 'valu'
            self.dst = regs_of(ops[0]); self.src = sum((regs_of(o) for o in ops[1:]), [])
            if op.startswith('v_cmpx'): self.dst.append('exec')
        elif op.startswith('v_permlane') and 'swap' in op:
            self.kind = 'valu'
            self.dst = regs_of(ops[0]) + regs_of(ops[1]); self.src = list(self.dst)
        elif op.startswith('v_readfirstlane') or op.startswith('v_readlane'):
            self.kind = 'valu'
            self.dst = regs_of(ops[0]); self.src = sum((regs_of(o) for o in ops[1:]), [])
        elif op.startswith('v_'):
            self.kind = 'valu'
            self.dst = regs_of(ops[0]); srcs = ops[1:]
            if op.startswith(('v_add_co', 'v_sub_co', 'v_addc_co', 'v_subb_co', 'v_subrev_co')):
                self.dst += regs_of(ops[1]); srcs = ops[2:]
            self.src = sum((regs_of(o) for o in srcs), [])
            if op.startswith(('v_fmac', 'v_mac', 'v_pk_fmac', 'v_dot2c', 'v_writelane')): self.src += self.dst
            if op.startswith('v_cndmask') and len(ops) == 3: self.src.append('vcc')
            if 'UNUSED_PRESERVE' in t: self.src += self.dst
        elif op.startswith('ds_'):
            self.kind = 'ds'
            if op.startswith(('ds_read', 'ds_bpermute', 'ds_permute', 'ds_swizzle')) or '_rtn' in op:
                self.dst = regs_of(ops[0]); self.src = sum((regs_of(o) for o in ops[1:]), [])
            else:
                self.src = sum((regs_of(o) for o in ops), [])
        elif op.startswith(('buffer_', 'global_')):
            self.kind = 'vmem'
            allr = [regs_of(o) for o in ops]
            if op.startswith(('buffer_load', 'global_load')) and ' lds' not in (' ' + t) and 'load_lds' not in op:
                self.dst = allr[0]; self.src = sum(allr[1:], [])
            elif 'atomic' in op and ('sc0' in t):
                self.dst = allr[0]; self.src = sum(allr, [])
            else:
                self.src = sum(allr, [])
            if ' lds' in (' ' + t) or 'load_lds' in op: self.src.append('m0')
        elif op.startswith('s_'):
            self.kind = 'salu'
            if op in ('s_nop', 's_waitcnt', 's_barrier', 's_endpgm', 's_setprio', 's_sleep', 's_branch') or op.startswith('s_cbranch'):
                pass
            elif op.startswith('s_cmp') or op.startswith('s_bitcmp'):
                self.src = sum((regs_of(o) for o in ops), []); self.dst = ['scc']
            else:
                self.dst = regs_of(ops[0]) if ops else []
                self.src = sum((regs_of(o) for o in ops[1:]), [])
                if 'saveexec' in op: self.dst.append('exec')
    def states(self):
        if self.kind == 'label': return 0
        if self.op == 's_nop': return int(self.ops[0], 0) + 1
        return 1

def split_ops(s):
    out = []; depth = 0; cur = ''
    for ch in s:
        if ch in '[(': depth += 1
        if ch in '])': depth -= 1
        if ch == ',' and depth == 0:
            out.append(cur); cur = ''
        else:
            cur += ch
    if cur.strip(): out.append(cur)
    return out

def mfma_passes(op):
    if '32x32x16' in op or '32x32x8' in op: return 8
    if '16x16x32' in op or '16x16x16' in op: return 4
    raise ValueError(op)

def is_trans(i): return i.op.startswith(TRANS)
def vregs(l): return [r for r in l if r[0] in 'va' and r[1:].isdigit()]
def sregs(l): return [r for r in l if (r[0] == 's' and r[1:].isdigit()) or r in ('vcc',)]

def required_wait(prev, cur):
    need = 0
    pd = set(prev.dst); cs = set(cur.src); cd = set(cur.dst)
    if prev.kind == 'valu':
        pv = set(vregs(prev.dst))
        if cur.kind == 'mfma' and pv & set(vregs(cur.src)): need = max(need, 2)
        if cur.op.startswith(('v_readlane', 'v_readfirstlane')) and pv & cs: need = max(need, 1)
        if cur.op.startswith('v_permlane') and pv & cs: need = max(need, 2)
        if 'dpp' in cur.text and cur.kind == 'valu' and pv & cs: need = max(need, 2)
        if is_trans(prev) and cur.kind in ('valu',) and not is_trans(cur) and pv & cs: need = max(need, 1)
        if is_trans(prev) and cur.kind == 'valu' and is_trans(cur) and pv & cs: need = max(need, 1)
        if ('sdwa' in prev.text or 'op_sel' in prev.text) and cur.kind == 'valu' and pv & (cs | cd): need = max(need, 1)
        ps = set(sregs(prev.dst))
        if ps:
            if cur.kind == 'vmem' and ps & cs: need = max(need, 5)
            if cur.kind == 'valu' and ps & cs: need = max(need, 2)
            if cur.op.startswith(('v_readlane', 'v_writelane')) and ps & cs: need = max(need, 4)
            if cur.kind == 'salu' and ps & cs: need = max(need, 4)
            if cur.op.startswith('s_cbranch_vcc') and 'vcc' in ps: need = max(need, 5)
        if 'exec' in pd:
            need = max(need, 5 if (cur.kind in ('valu', 'mfma') or cur.op.startswith('s_cbranch_exec')) else 0)
    if prev.kind == 'mfma':
        p = mfma_passes(prev.op)
        d = set(prev.dst)
        if cur.kind == 'mfma':
            c = set(regs_of(cur.ops[3])); ab = set(regs_of(cur.ops[1]) + regs_of(cur.ops[2]))
            if d & ab: need = max(need, {4: 8, 8: 12}[p])
            if d & c:
                same = (regs_of(cur.ops[3]) == prev.dst) and mfma_passes(cur.op) == p
                if not same: need = max(need, {4: 6, 8: 10}[p])
            if d & set(cur.dst) and not (d & c): need = max(need, {4: 6, 8: 10}[p])
        elif cur.kind in ('valu', 'ds', 'vmem'):
            if d & (cs | cd): need = max(need, {4: 8, 8: 12}[p])
        if cur.kind == 'valu':
            c = set(regs_of(prev.ops[3]))
            if c & cd: need = max(need, {4: 3, 8: 7}[p])
    if prev.kind == 'vmem' and ('store' in prev.op or 'atomic' in prev.op) and ('x4' in prev.op or 'x3' in prev.op):
        data = set(regs_of(prev.ops[0]))
        if cur.kind == 'valu' and data & cd: need = max(need, 2)
        elif data & cd: need = max(need, 1)
    if prev.kind == 'salu' and 'm0' in pd:
        if cur.kind == 'vmem' and 'm0' in cs: need = max(need, 1)
    return need

WINDOW = 24

def fix_hazards(lines):
    out = []
    for text in lines:
        cur = Ins(text)
        if cur.kind != 'label' or True:
            need_extra = 0; dist = 0
            for prev in reversed(out[-(WINDOW * 2):]):
                if dist >= 20: break
                if cur.kind != 'label':
                    r = required_wait(prev, cur)
                    if r > dist: need_extra = max(need_extra, r - dist)
                dist += prev.states()
            while need_extra > 0:
                n = min(need_extra, 16)
                out.append(Ins(f's_nop {n-1}'))
                need_extra -= n
        out.append(cur)
    return out

def check_backedges(inss):
    labels = {}
    for idx, i in enumerate(inss):
        if i.kind == 'label' and i.op.endswith(':'): labels[i.op[:-1]] = idx
    problems = []
    for idx, i in enumerate(inss):
        if i.op.startswith(('s_cbranch', 's_branch')):
            tgt = labels.get(i.ops[0])
            if tgt is None: continue
            seq_tail = inss[max(0, idx - 40):idx + 1]
            head = inss[tgt:tgt + 40]
            for hi, cur in enumerate(head):
                if cur.kind == 'label': continue
                dist = sum(x.states() for x in head[:hi])
                if dist >= 20: break
                for prev in reversed(seq_tail):
                    if dist >= 20: break
                    r = required_wait(prev, cur)
                    if r > dist: problems.append((i.text, prev.text, cur.text, r, dist))
                    dist += prev.states()
    return problems

class Asm:
    def __init__(self):
        self.lines = []
    def __call__(self, s):
        for l in s.split('\n'):
            l = l.strip()
            if l: self.lines.append(l)
    def label(self, name): self.lines.append(name + ':')
    def comment(self, c): self.lines.append('; ' + c)
    def render(self):
        code = [l for l in self.lines]
        inss = fix_hazards([l for l in code if not l.startswith(';')])
        probs = check_backedges(inss)
        if probs:
            for p in probs: print("BACKEDGE HAZARD:", p)
            raise SystemExit("back-edge hazards")
        out = []
        for i in inss:
            if i.kind == 'label': out.append(i.text)
            else: out.append('    ' + i.text)
        return '\n'.join(out) + '\n'

def vr(a, n=1):
    return f'v{a}' if n == 1 else f'v[{a}:{a+n-1}]'
def sr(a, n=1):
    return f's{a}' if n == 1 else f's[{a}:{a+n-1}]'
```

```python
from common import *

QR   = 4
KA_, VA_ = 8, 9
KB   = [12, 16]
VB   = [20, 28]
SB   = [36, 52]
PB   = [68, 76]
OA   = 84
CB   = 100
TMP  = 116
GATEV = 132
S_EXLO = 40
S_LOOP, S_PASS = 42, 43
UNROLL = 8

def mf32(d, a_, b_, c): return f"v_mfma_f32_32x32x16_bf16 {vr(d,16)}, {vr(a_,4)}, {vr(b_,4)}, {c}"
def qk(kb):  return mf32(SB[kb % 2], KB[kb % 2], QR, vr(CB, 16))
def pv(kb, m): return mf32(OA, VB[kb % 2] + 4*m, PB[kb % 2] + 4*m, vr(OA, 16))
def ex(kb, i): return f"v_exp_f32 v{SB[kb % 2]+i}, v{SB[kb % 2]+i}"
def cv(kb, i): return f"v_cvt_pk_bf16_f32 v{PB[kb % 2]+i}, v{SB[kb % 2]+2*i}, v{SB[kb % 2]+2*i+1}"
def rdK(kb, rel): return f"ds_read_b128 {vr(KB[kb % 2],4)}, v{KA_} offset:{rel*2048}"
def rdV(kb, rel): return [f"s_mov_b64 exec, s[{S_EXLO}:{S_EXLO+1}]",
                          f"ds_read_b128 {vr(VB[kb % 2],4)}, v{VA_} offset:{rel*2048+1024}",
                          f"ds_read_b128 {vr(VB[kb % 2]+4,4)}, v{VA_} offset:{rel*2048+1536}",
                          "s_mov_b64 exec, -1"]

def emit_attn_setup(a, lds_base=0):
    a(f"v_lshlrev_b32 v{KA_}, 4, v0")
    if lds_base: a(f"v_add_u32 v{KA_}, {lds_base}, v{KA_}")
    a(f"v_and_b32 v{TMP}, 15, v0")
    a(f"v_lshlrev_b32 v{TMP}, 4, v{TMP}")
    a(f"v_lshrrev_b32 v{TMP+1}, 5, v0")
    a(f"v_lshl_add_u32 v{VA_}, v{TMP+1}, 8, v{TMP}")
    if lds_base: a(f"v_add_u32 v{VA_}, {lds_base}, v{VA_}")
    a(f"s_mov_b32 s{S_EXLO}, 0x0000ffff")
    a(f"s_mov_b32 s{S_EXLO+1}, 0x0000ffff")
    a(f"v_and_b32 v{TMP}, 27, v0")
    a(f"v_cmp_eq_u32 vcc, 16, v{TMP}")
    a(f"v_mov_b32 v{TMP+1}, 0x3f803f80")
    a(f"v_cndmask_b32 v{TMP}, 0, v{TMP+1}, vcc")
    for b in range(2):
        for i in range(8): a(f"v_mov_b32 v{VB[b]+i}, v{TMP}")

def emit_pass_init(a):
    for i in range(16): a(f"v_mov_b32 v{OA+i}, 0")
    for i in range(8): a(f"v_mov_b32 v{PB[1]+i}, 0")
    a(f"v_mov_b32 v{SB[1]+14}, 0")
    a(f"v_mov_b32 v{SB[1]+15}, 0")
    a(rdK(0, 0)); a(rdK(1, 1))
    for l in rdV(0, 0): a(l)
    a("s_waitcnt lgkmcnt(3)")
    a(qk(0))
    a(rdK(2, 2))
    for l in rdV(1, 0): a(l)

def emit_step(a, kb, last_iter_static=False):
    for i in range(8):
        a(ex(kb, 2*i)); a(ex(kb, 2*i+1))
        a(cv(kb-1, 7) if i == 0 else cv(kb, i-1))
        if i == 1:
            a("s_waitcnt lgkmcnt(3)")
            a(qk(kb+1))
            a(rdK(kb+1, kb+3))
        if i == 3: a(pv(kb-1, 0))
        if i == 6:
            a(pv(kb-1, 1))
            for l in rdV(kb+1, kb+1): a(l)

def emit_attn_loop(a, label):
    a(f"s_mov_b32 s{S_LOOP}, {64 // UNROLL}")
    a.label(f"{label}_loop")
    for kb in range(UNROLL): emit_step(a, kb)
    a(f"v_add_u32 v{KA_}, {UNROLL*2048}, v{KA_}")
    a(f"v_add_u32 v{VA_}, {UNROLL*2048}, v{VA_}")
    a(f"s_sub_u32 s{S_LOOP}, s{S_LOOP}, 1")
    a(f"s_cmp_lg_u32 s{S_LOOP}, 0")
    a(f"s_cbranch_scc1 {label}_loop")
    a(cv(63, 7))
    a("s_waitcnt lgkmcnt(0)")
    a(pv(63, 0)); a(pv(63, 1))
    a(f"v_subrev_u32 v{KA_}, {64*2048}, v{KA_}")
    a(f"v_subrev_u32 v{VA_}, {64*2048}, v{VA_}")

def emit_maxpass(a, label):
    M = TMP
    a(f"v_mov_b32 v{M}, 0xff800000")
    a(f"v_mov_b32 v{M+1}, v{KA_}")
    a(f"s_mov_b32 s{S_LOOP}, 64")
    a.label(f"{label}_mx")
    a(f"ds_read_b128 {vr(KB[0],4)}, v{M+1}")
    a(f"v_add_u32 v{M+1}, 2048, v{M+1}")
    a("s_waitcnt lgkmcnt(0)")
    a(mf32(SB[0], KB[0], QR, "0"))
    for i in range(8):
        a(f"v_max3_f32 v{M}, v{M}, v{SB[0]+2*i}, v{SB[0]+2*i+1}")
    a(f"s_sub_u32 s{S_LOOP}, s{S_LOOP}, 1")
    a(f"s_cmp_lg_u32 s{S_LOOP}, 0")
    a(f"s_cbranch_scc1 {label}_mx")
    a(f"v_mov_b32 v{M+1}, v{M}")
    a(f"v_permlane32_swap_b32 v{M}, v{M+1}")
    a(f"v_max_f32 v{M}, v{M}, v{M+1}")
    for i in range(16): a(f"v_sub_f32 v{CB+i}, 0, v{M}")

def emit_attention(a, label):
    for i in range(16): a(f"v_mov_b32 v{CB+i}, 0")
    a(f"s_mov_b32 s{S_PASS}, 0")
    a.label(f"{label}_pass")
    emit_pass_init(a)
    emit_attn_loop(a, label)
    a(f"s_cmp_lg_u32 s{S_PASS}, 0")
    a(f"s_cbranch_scc1 {label}_done")
    a("s_nop 7")
    a(f"v_mov_b32 v{TMP}, {hexf(2.0**-64)}")
    a(f"v_mov_b32 v{TMP+1}, {hexf(2.0**64)}")
    a(f"v_cmp_ge_f32 s[44:45], v{OA+8}, v{TMP}")
    a(f"v_cmp_le_f32 s[46:47], v{OA+8}, v{TMP+1}")
    a(f"s_and_b64 s[44:45], s[44:45], s[46:47]")
    a(f"v_mov_b32 v{TMP}, 0x7f800000")
    for i in range(8):
        a(f"v_cmp_lt_f32 s[46:47], abs(v{OA+i}), v{TMP}")
        a(f"s_and_b64 s[44:45], s[44:45], s[46:47]")
    a(f"s_cmp_eq_u64 s[44:45], exec")
    a(f"s_cbranch_scc1 {label}_done")
    emit_maxpass(a, label)
    a(f"s_mov_b32 s{S_PASS}, 1")
    a(f"s_branch {label}_pass")
    a.label(f"{label}_done")

def emit_o_frag(a, dst):
    a("s_nop 7")
    a(f"v_rcp_f32 v{TMP}, v{OA+8}")
    a(f"v_mul_f32 v{TMP}, v{TMP}, v{GATEV}")
    for i in range(8): a(f"v_mul_f32 v{OA+i}, v{OA+i}, v{TMP}")
    for i in range(4): a(f"v_cvt_pk_bf16_f32 v{dst+i}, v{OA+2*i}, v{OA+2*i+1}")

def kernel_B(label):
    S_WS, S_WAVE, S_GR, S_M, T0, T1 = 4, 20, 21, 22, 24, 25
    a = Asm()
    wg_decode(a, S_GR, S_M, f"{label}_exit")
    srd(a, S_WS, 'ws', WS_BYTES)
    wave_id(a, S_WAVE, 1)
    a("s_waitcnt lgkmcnt(0)")
    a(f"v_lshlrev_b32 v2, 4, v0")
    a(f"s_lshl_b32 s{T0}, s{S_WAVE}, 10")
    a(f"s_add_u32 s{T1}, s{T0}, {KVF}")
    for i in range(16):
        a(f"s_add_u32 m0, s{T0}, {i*8192}")
        a(f"s_add_u32 s26, s{T1}, {i*8192}")
        a(f"buffer_load_dwordx4 v2, {sr(S_WS,4)}, s26 offen lds")
    a(f"s_and_b32 s{T0}, s{S_WAVE}, 3")
    a(f"s_lshl_b32 s{T1}, s{S_GR}, 2")
    a(f"s_add_u32 s{T0}, s{T0}, s{T1}")
    a(f"s_lshl_b32 s27, s{T0}, 7")
    a(f"s_add_u32 s27, s27, {GATE}")
    a(f"s_lshl_b32 s{T0}, s{T0}, 5")
    a(f"s_lshl_b32 s{T1}, s{S_M}, 1")
    a(f"s_add_u32 s{T0}, s{T0}, s{T1}")
    a(f"s_lshr_b32 s{T1}, s{S_WAVE}, 2")
    a(f"s_add_u32 s{T0}, s{T0}, s{T1}")
    a(f"s_lshl_b32 s{T0}, s{T0}, 10")
    a(f"s_add_u32 s28, s{T0}, {QF}")
    a(f"s_add_u32 s29, s{T0}, {OF}")
    a(f"buffer_load_dwordx4 {vr(QR,4)}, v2, {sr(S_WS,4)}, s28 offen")
    a(f"v_and_b32 v3, 31, v0")
    a(f"v_lshlrev_b32 v3, 2, v3")
    a(f"buffer_load_dword v{GATEV}, v3, {sr(S_WS,4)}, s27 offen")
    emit_attn_setup(a)
    a("s_waitcnt vmcnt(0)")
    a("s_barrier")
    emit_attention(a, label)
    emit_o_frag(a, TMP+4)
    a(f"buffer_store_dwordx4 {vr(TMP+4,4)}, v2, {sr(S_WS,4)}, s29 offen")
    a.label(f"{label}_exit")
    a("s_endpgm")
    return a.render()
```

```python
from asmlib import *
NAME = "gated_mix__grouped_kv_mqa__dense_activation_silu__prompt"
QF, KVF, GATE, HF, OF, FLAGS = 0x000000, 0x200000, 0x220000, 0x300000, 0xA00000, 0xC00000
WS_BYTES = 0x1000000
LOG2E = 1.4426950408889634
import struct
def f32(x): return struct.unpack('<I', struct.pack('<f', x))[0]
def hexf(x): return hex(f32(x))

KA = dict(x=0, wq=8, wk=16, wv=24, wo=32, bx=40, w1=48, w2=56, gate=64, out=72, dbg=80, ws=88)

def srd(a, s, ptr, nbytes):
    a(f"s_load_dwordx2 {sr(s,2)}, s[0:1], {KA[ptr]}")
    a(f"s_mov_b32 s{s+2}, {hex(nbytes)}")
    a(f"s_mov_b32 s{s+3}, 0x00020000")

def wg_decode(a, s_gr, s_m, exit_label):
    a(f"s_cmp_ge_u32 s2, 256")
    a(f"s_cbranch_scc1 {exit_label}")
    a(f"s_and_b32 s{s_gr}, s2, 7")
    a(f"s_lshl_b32 s{s_gr}, s{s_gr}, 1")
    a(f"s_lshr_b32 s{s_m}, s2, 7")
    a(f"s_add_u32 s{s_gr}, s{s_gr}, s{s_m}")
    a(f"s_lshr_b32 s{s_m}, s2, 3")
    a(f"s_and_b32 s{s_m}, s{s_m}, 15")

def wave_id(a, s_w, vtmp):
    a(f"v_lshrrev_b32 {vr(vtmp)}, 6, v0")
    a(f"v_readfirstlane_b32 s{s_w}, {vr(vtmp)}")
    a(f"v_and_b32 v0, 63, v0")

def descriptor(name, vgpr, sgpr=102):
    return f""".section .rodata,"a"
.p2align 6
.amdhsa_kernel {name}
  .amdhsa_next_free_vgpr {vgpr}
  .amdhsa_next_free_sgpr {sgpr}
  .amdhsa_accum_offset {((vgpr+3)//4)*4}
  .amdhsa_group_segment_fixed_size 0
  .amdhsa_kernarg_size 96
  .amdhsa_user_sgpr_count 2
  .amdhsa_user_sgpr_kernarg_segment_ptr 1
  .amdhsa_system_sgpr_workgroup_id_x 1
  .amdhsa_float_denorm_mode_32 3
.end_amdhsa_kernel
"""

def kernel_head(label):
    return f""".text
.globl {label}
.p2align 8
.type {label},@function
{label}:
"""
```

```python
from common import *

ACC  = 64
AB   = [32, 40]
DEPTH = 4
BB   = [128, 136, 144, 152]
V_LIN, V_DW, V_A0, V_A1 = 8, 9, 10, 11
V_G0, V_G1 = 12, 13
RING_STAGE = 2048
S_WS, S_W2, S_WO, S_OUT = 4, 8, 12, 16
S_G, S_GR, S_M = 28, 21, 22
T0, T1, T2, T3 = 24, 25, 26, 27
S_RING, S_HB, S_OB, S_WB2, S_WBO = 30, 31, 32, 33, 34

def emit_setup(a, ring_base):
    t0, t1, t2 = 16, 17, 18
    a(f"v_lshlrev_b32 v{V_LIN}, 4, v0")
    a(f"v_lshrrev_b32 v{t0}, 3, v0")
    a(f"v_bfe_u32 v{t1}, v0, 4, 1")
    a(f"v_lshlrev_b32 v{t1}, 2, v{t1}")
    a(f"v_and_b32 v{t2}, 7, v0")
    a(f"v_xor_b32 v{t1}, v{t1}, v{t2}")
    a(f"v_lshlrev_b32 v{t1}, 4, v{t1}")
    a(f"v_lshl_add_u32 v{V_DW}, v{t0}, 10, v{t1}")
    a(f"s_lshr_b32 s{T0}, s{S_M}, 1")
    a(f"s_lshl_b32 s{T0}, s{T0}, 7")
    a(f"v_add_u32 v{V_DW}, s{T0}, v{V_DW}")
    a(f"s_lshl_b32 s{S_RING}, s{S_G}, 13")
    if ring_base: a(f"s_add_u32 s{S_RING}, s{S_RING}, {ring_base}")
    a(f"v_bfe_u32 v{t0}, v0, 2, 2")
    a(f"v_lshrrev_b32 v{t1}, 5, v0")
    a(f"v_lshl_add_u32 v{t1}, v{t1}, 2, v{t0}")
    a(f"v_lshlrev_b32 v{V_A0}, 7, v{t1}")
    a(f"v_lshrrev_b32 v{t0}, 1, v{t0}")
    a(f"v_lshl_add_u32 v{V_A0}, v{t0}, 6, v{V_A0}")
    a(f"v_bfe_u32 v{t1}, v0, 4, 1")
    a(f"v_lshl_add_u32 v{V_A0}, v{t1}, 5, v{V_A0}")
    a(f"v_bfe_u32 v{t1}, v0, 1, 1")
    a(f"v_lshl_add_u32 v{V_A0}, v{t1}, 4, v{V_A0}")
    a(f"v_and_b32 v{t1}, 1, v0")
    a(f"v_lshl_add_u32 v{V_A0}, v{t1}, 3, v{V_A0}")
    a(f"v_add_u32 v{V_A0}, s{S_RING}, v{V_A0}")
    a(f"v_xor_b32 v{V_A1}, 64, v{V_A0}")
    a(f"s_and_b32 s{T0}, s{S_M}, 1")
    a(f"s_lshl_b32 s{T0}, s{T0}, 1")
    a(f"s_lshl_b32 s{T1}, s{S_GR}, 2")
    a(f"s_add_u32 s{T0}, s{T0}, s{T1}")
    a(f"s_mul_i32 s{T1}, s{T0}, 112")
    a(f"s_mul_i32 s{T2}, s{S_G}, 28")
    a(f"s_add_u32 s{T1}, s{T1}, s{T2}")
    a(f"s_lshl_b32 s{S_HB}, s{T1}, 10")
    a(f"s_add_u32 s{S_HB}, s{S_HB}, {HF}")
    a(f"s_lshl_b32 s{T1}, s{T0}, 5")
    a(f"s_lshl_b32 s{T2}, s{S_G}, 3")
    a(f"s_add_u32 s{T1}, s{T1}, s{T2}")
    a(f"s_lshl_b32 s{S_OB}, s{T1}, 10")
    a(f"s_add_u32 s{S_OB}, s{S_OB}, {OF}")
    a(f"s_mul_i32 s{S_WB2}, s{S_G}, {28*16*1024}")
    a(f"s_lshl_b32 s{S_WBO}, s{S_G}, 17")
    a(f"s_lshl_b32 s{T1}, s{T0}, 7")
    a(f"s_add_u32 s{T1}, s{T1}, {GATE}")
    a(f"v_and_b32 v{t0}, 31, v0")
    a(f"v_lshlrev_b32 v{t0}, 2, v{t0}")
    return t0, T1

def issue(a, j, which, sc=""):
    slot = j % DEPTH
    loc = j if which == 'h' else j - 28
    wsrd, wbase = (S_W2, S_WB2) if which == 'h' else (S_WO, S_WBO)
    abase, astride = (S_HB, 112*1024) if which == 'h' else (S_OB, 32*1024)
    for i in range(2):
        a(f"s_add_u32 m0, s{S_RING}, {slot*RING_STAGE + i*1024}")
        a(f"s_add_u32 s{T2}, s{wbase}, {(loc*16 + 8*i)*1024}")
        a(f"buffer_load_dwordx4 v{V_DW}, {sr(wsrd,4)}, s{T2} offen lds")
    for tt in range(2):
        a(f"s_add_u32 s{T2}, s{abase}, {loc*1024 + tt*astride}")
        a(f"buffer_load_dwordx4 {vr(BB[slot]+4*tt,4)}, v{V_LIN}, {sr(S_WS,4)}, s{T2} offen {sc}")

def reads(a, j):
    slot = j % DEPTH; buf = j & 1
    for nt in range(2):
        w = AB[buf] + 4*nt
        a(f"ds_read_b64_tr_b16 {vr(w,2)}, v{V_A0+nt} offset:{slot*RING_STAGE}")
        a(f"ds_read_b64_tr_b16 {vr(w+2,2)}, v{V_A0+nt} offset:{slot*RING_STAGE+1024}")

def mfmas(a, j, first):
    slot = j % DEPTH; buf = j & 1
    for nt in range(2):
        for tt in range(2):
            acc = ACC + 16*(2*nt + tt)
            a(f"v_mfma_f32_32x32x16_bf16 {vr(acc,16)}, {vr(AB[buf]+4*nt,4)}, {vr(BB[slot]+4*tt,4)}, {'0' if first else vr(acc,16)}")

def emit_range(a, j0, j1, which, after_first=None):
    n = j1 - j0
    a(f"s_waitcnt vmcnt({4*(min(DEPTH, n)-1)})")
    reads(a, j0)
    for j in range(j0, j1):
        rem = j1 - 1 - j
        if rem > 0:
            infl = min(DEPTH - 1, rem)
            a(f"s_waitcnt vmcnt({4*(infl-1)})")
            reads(a, j+1)
            a("s_waitcnt lgkmcnt(4)")
        else:
            a("s_waitcnt lgkmcnt(0)")
        mfmas(a, j, first=(which == 'h' and j == j0))
        if j + DEPTH < j1: issue(a, j + DEPTH, which)

def emit_scale_by_one_minus_g(a):
    a(f"v_sub_f32 v16, 1.0, v{V_G0}")
    a(f"v_sub_f32 v17, 1.0, v{V_G1}")
    for nt in range(2):
        for tt in range(2):
            acc = ACC + 16*(2*nt + tt)
            for i in range(16): a(f"v_mul_f32 v{acc+i}, v{acc+i}, v{16+tt}")

RED_ROW = 256
def emit_reduce_store(a, red_base):
    t0, t1, t2, t3 = 16, 17, 18, 19
    a(f"v_and_b32 v{t0}, 31, v0")
    a(f"v_lshrrev_b32 v{t1}, 5, v0")
    a(f"v_and_b32 v{t2}, 15, v0")
    a(f"v_xor_b32 v{t1}, v{t1}, v{t2}")
    a(f"v_lshlrev_b32 v{t1}, 4, v{t1}")
    a(f"v_lshl_add_u32 v{t0}, v{t0}, 8, v{t1}")
    a(f"s_lshl_b32 s{T0}, s{S_G}, 14")
    if red_base: a(f"s_add_u32 s{T0}, s{T0}, {red_base}")
    a(f"v_add_u32 v{t0}, s{T0}, v{t0}")
    for nt in range(2):
        for q in range(4):
            a(f"v_xor_b32 v{t3}, {(8*nt + 2*q)*16}, v{t0}")
            for tt in range(2):
                acc = ACC + 16*(2*nt + tt) + 4*q
                a(f"ds_write_b128 v{t3}, {vr(acc,4)} offset:{tt*8192}")
    a("s_waitcnt lgkmcnt(0)")
    a("s_barrier")
    a(f"v_lshrrev_b32 v{t0}, 3, v0")
    a(f"v_and_b32 v{t1}, 7, v0")
    a(f"v_lshlrev_b32 v{t1}, 1, v{t1}")
    a(f"s_lshl_b32 s{T0}, s{S_G}, 4")
    for i in range(2):
        a(f"v_add_u32 v{t2}, {8*i}, v{t0}")
        a(f"v_xor_b32 v{t3}, v{t1}, v{t2}")
        a(f"v_lshlrev_b32 v{t3}, 4, v{t3}")
        a(f"v_add_u32 v{t2}, s{T0}, v{t2}")
        a(f"v_lshl_add_u32 v{20+i}, v{t2}, 8, v{t3}")
        if red_base: a(f"v_add_u32 v{20+i}, {red_base}, v{20+i}")
        a(f"v_xor_b32 v{22+i}, 16, v{20+i}")
    for i in range(2):
        for w in range(4):
            a(f"ds_read_b128 {vr(64+32*i+8*w,4)}, v{20+i} offset:{w*16384}")
            a(f"ds_read_b128 {vr(64+32*i+8*w+4,4)}, v{22+i} offset:{w*16384}")
    a(f"s_and_b32 s{T1}, s{S_M}, 1")
    a(f"s_lshl_b32 s{T1}, s{T1}, 6")
    a(f"s_lshl_b32 s{T2}, s{S_GR}, 7")
    a(f"s_add_u32 s{T1}, s{T1}, s{T2}")
    a(f"s_add_u32 s{T1}, s{T1}, s{T0}")
    a(f"v_add_u32 v{t2}, s{T1}, v{t0}")
    a(f"v_lshlrev_b32 v{t2}, 10, v{t2}")
    a(f"v_and_b32 v{t1}, 7, v0")
    a(f"v_lshl_add_u32 v{t2}, v{t1}, 4, v{t2}")
    a(f"s_lshr_b32 s{T1}, s{S_M}, 1")
    a(f"s_lshl_b32 s{T1}, s{T1}, 7")
    for i in range(2):
        a(f"s_waitcnt lgkmcnt({8 if i == 0 else 0})")
        b = 64 + 32*i
        for e in range(8):
            a(f"v_add_f32 v{b+e}, v{b+e}, v{b+8+e}")
            a(f"v_add_f32 v{b+16+e}, v{b+16+e}, v{b+24+e}")
        for e in range(8):
            a(f"v_add_f32 v{b+e}, v{b+e}, v{b+16+e}")
        for e in range(4):
            a(f"v_cvt_pk_bf16_f32 v{32+4*i+e}, v{b+2*e}, v{b+2*e+1}")
        a(f"s_add_u32 s{T2}, s{T1}, {i*8192}")
        a(f"buffer_store_dwordx4 {vr(32+4*i,4)}, v{t2}, {sr(S_OUT,4)}, s{T2} offen")

def kernel_C(label):
    a = Asm()
    wg_decode(a, S_GR, S_M, f"{label}_exit")
    srd(a, S_WS, 'ws', WS_BYTES)
    srd(a, S_W2, 'w2', 1792*1024)
    srd(a, S_WO, 'wo', 512*1024)
    srd(a, S_OUT, 'out', 2048*1024)
    wave_id(a, S_G, 1)
    a("s_waitcnt lgkmcnt(0)")
    vg, sg = emit_setup(a, 65536)
    a(f"buffer_load_dword v{V_G0}, v{vg}, {sr(S_WS,4)}, s{sg} offen")
    a(f"buffer_load_dword v{V_G1}, v{vg}, {sr(S_WS,4)}, s{sg} offen offset:128")
    for j in range(DEPTH): issue(a, j, 'h')
    emit_range(a, 0, 28, 'h')
    for j in range(28, 28 + DEPTH): issue(a, j, 'o')
    emit_scale_by_one_minus_g(a)
    emit_range(a, 28, 36, 'o')
    emit_reduce_store(a, 0)
    a.label(f"{label}_exit")
    a("s_endpgm")
    return a.render()
```

```python
from common import *

SLOT = 36864
XOFF, WOFF, QOFF = 0, 16384, 32768
GATE_LDS = 4 * SLOT
NSTAGE = 8

S_X, S_W, S_WS, S_WQ = 4, 8, 12, 16
S_WAVE, S_GR, S_M = 20, 21, 22
S_T0, S_T1, S_T2, S_T3 = 24, 25, 26, 27
S_G = 28

def lane_fields(a):
    pass

def emit_A_setup(a):
    V_QA, V_QW, V_DX, V_DQ = 8, 10, 12, 14
    t0, t1, t2, t3 = 16, 17, 18, 19
    a(f"v_and_b32 v{t0}, 15, v0")
    a(f"v_lshrrev_b32 v{t1}, 1, v{t0}")
    a(f"v_lshrrev_b32 v{t2}, 4, v0")
    a(f"v_xor_b32 v{t3}, v{t2}, v{t1}")
    a(f"v_lshlrev_b32 v{t3}, 4, v{t3}")
    a(f"v_lshl_add_u32 v{V_QA}, v{t0}, 7, v{t3}")
    a(f"s_and_b32 s{S_T0}, s{S_WAVE}, 3")
    a(f"s_lshl_b32 s{S_T0}, s{S_T0}, 12")
    a(f"v_add_u32 v{V_QA}, s{S_T0}, v{V_QA}")
    a(f"v_xor_b32 v{V_QA+1}, 64, v{V_QA}")
    a(f"v_lshrrev_b32 v{t1}, 2, v{t0}")
    a(f"v_lshl_add_u32 v{t1}, v{t2}, 3, v{t1}")
    a(f"v_lshlrev_b32 v{V_QW}, 6, v{t1}")
    a(f"v_bfe_u32 v{t1}, v0, 1, 1")
    a(f"s_lshr_b32 s{S_T1}, s{S_WAVE}, 2")
    a(f"s_lshl_b32 s{S_T1}, s{S_T1}, 1")
    a(f"v_add_u32 v{t1}, s{S_T1}, v{t1}")
    a(f"v_and_b32 v{t3}, 1, v{t2}")
    a(f"v_lshlrev_b32 v{t3}, 1, v{t3}")
    a(f"v_xor_b32 v{t1}, v{t1}, v{t3}")
    a(f"v_lshl_add_u32 v{V_QW}, v{t1}, 4, v{V_QW}")
    a(f"v_and_b32 v{t1}, 1, v0")
    a(f"v_lshl_add_u32 v{V_QW}, v{t1}, 3, v{V_QW}")
    a(f"v_add_u32 v{V_QW}, {QOFF}, v{V_QW}")
    a(f"v_lshrrev_b32 v{t1}, 3, v0")
    a(f"s_lshl_b32 s{S_T0}, s{S_GR}, 7")
    a(f"s_lshl_b32 s{S_T1}, s{S_WAVE}, 4")
    a(f"s_add_u32 s{S_T0}, s{S_T0}, s{S_T1}")
    a(f"v_add_u32 v{t1}, s{S_T0}, v{t1}")
    a(f"v_lshlrev_b32 v{t1}, 10, v{t1}")
    a(f"v_and_b32 v{t3}, 7, v0")
    a(f"v_xor_b32 v{t3}, v{t3}, v{t2}")
    a(f"v_lshl_add_u32 v{V_DX}, v{t3}, 4, v{t1}")
    a(f"v_xor_b32 v{V_DX+1}, 64, v{V_DX}")
    a(f"v_add_u32 v{V_DX+1}, 8192, v{V_DX+1}")
    a(f"v_lshrrev_b32 v{t1}, 2, v0")
    a(f"s_and_b32 s{S_T0}, s{S_WAVE}, 3")
    a(f"s_lshl_b32 s{S_T0}, s{S_T0}, 4")
    a(f"v_add_u32 v{t1}, s{S_T0}, v{t1}")
    a(f"v_lshlrev_b32 v{t1}, 10, v{t1}")
    a(f"v_lshrrev_b32 v{t3}, 5, v0")
    a(f"v_lshlrev_b32 v{t3}, 1, v{t3}")
    a(f"v_and_b32 v{t0}, 3, v0")
    a(f"v_xor_b32 v{t3}, v{t3}, v{t0}")
    a(f"v_lshl_add_u32 v{V_DQ}, v{t3}, 4, v{t1}")
    a(f"s_lshl_b32 s{S_T0}, s{S_M}, 6")
    a(f"v_add_u32 v{V_DQ}, s{S_T0}, v{V_DQ}")
    a(f"s_lshl_b32 s30, s{S_WAVE}, 11")
    a(f"s_and_b32 s31, s{S_WAVE}, 3")
    a(f"s_lshl_b32 s31, s31, 10")
    a(f"s_add_u32 s31, s31, {QOFF}")

def emit_A_dma(a, s):
    slot = (s % 4) * SLOT
    for i in range(2):
        a(f"s_add_u32 m0, s30, {slot + i*1024}")
        a(f"s_mov_b32 s{S_T0}, {s*128}")
        a(f"buffer_load_dwordx4 v{12+i}, {sr(S_X,4)}, s{S_T0} offen lds")
    a(f"s_add_u32 m0, s31, {slot}")
    a(f"s_mov_b32 s{S_T0}, {s*65536}")
    a(f"buffer_load_dwordx4 v14, {sr(S_WQ,4)}, s{S_T0} offen lds")

A_ACC = 32
def emit_A_gemm(a):
    V_QA, V_QW = 8, 10
    XQ, WQ = 40, 56
    for s in range(3): emit_A_dma(a, s)
    for s in range(NSTAGE):
        inflight = min(2, NSTAGE - 1 - s)
        a(f"s_waitcnt vmcnt({3*inflight})")
        a("s_barrier")
        if s + 3 < NSTAGE: emit_A_dma(a, s + 3)
        for s2 in range(2):
            a(f"ds_read_b64_tr_b16 {vr(WQ+4*s2,2)}, v{V_QW} offset:{s2*2048}")
            a(f"ds_read_b64_tr_b16 {vr(WQ+4*s2+2,2)}, v{V_QW} offset:{s2*2048+256}")
            for u in range(2):
                a(f"ds_read_b128 {vr(XQ+8*s2+4*u,4)}, v{V_QA+s2} offset:{u*2048}")
        for s2 in range(2):
            a(f"s_waitcnt lgkmcnt({4 if s2 == 0 else 0})")
            for u in range(2):
                c = "0" if (s == 0 and s2 == 0) else vr(A_ACC+4*u,4)
                a(f"v_mfma_f32_16x16x32_bf16 {vr(A_ACC+4*u,4)}, {vr(WQ+4*s2,4)}, {vr(XQ+8*s2+4*u,4)}, {c}")
        if s + 1 < NSTAGE:
            d = SLOT if (s + 1) % 4 else -3 * SLOT
            for r in (V_QA, V_QA+1, V_QW):
                a(f"v_add_u32 v{r}, {hex(d & 0xffffffff)}, v{r}")

def emit_A_qfrag(a, dst):
    a(f"s_mov_b32 s{S_T0}, {hexf(0.25*LOG2E)}")
    for i in range(8):
        a(f"v_mul_f32 v{A_ACC+i}, s{S_T0}, v{A_ACC+i}")
    a(f"v_cvt_pk_bf16_f32 v{dst}, v{A_ACC}, v{A_ACC+1}")
    a(f"v_cvt_pk_bf16_f32 v{dst+1}, v{A_ACC+2}, v{A_ACC+3}")
    a(f"v_cvt_pk_bf16_f32 v{dst+2}, v{A_ACC+4}, v{A_ACC+5}")
    a(f"v_cvt_pk_bf16_f32 v{dst+3}, v{A_ACC+6}, v{A_ACC+7}")
    a(f"v_permlane16_swap_b32 v{dst}, v{dst+2}")
    a(f"v_permlane16_swap_b32 v{dst+1}, v{dst+3}")

G_ACC, G_XB, G_WB = 64, 32, 48
def emit_G_setup(a):
    t0, t1, t2, t3 = 16, 17, 18, 19
    a(f"s_and_b32 s{S_T0}, s{S_G}, 1")
    a(f"s_lshr_b32 s{S_T1}, s{S_G}, 1")
    a(f"v_and_b32 v{t0}, 31, v0")
    a(f"v_bfe_u32 v{t1}, v0, 1, 3")
    a(f"v_lshrrev_b32 v{t2}, 5, v0")
    a(f"v_xor_b32 v{t1}, v{t1}, v{t2}")
    a(f"v_lshlrev_b32 v{t1}, 4, v{t1}")
    a(f"v_lshl_add_u32 v8, v{t0}, 7, v{t1}")
    a(f"s_lshl_b32 s{S_T2}, s{S_T0}, 13")
    a(f"v_add_u32 v8, s{S_T2}, v8")
    for ks in range(1, 4):
        a(f"v_xor_b32 v{8+ks}, {32*ks}, v8")
    a(f"v_bfe_u32 v{t0}, v0, 2, 2")
    a(f"v_lshl_add_u32 v{t1}, v{t2}, 3, v{t0}")
    a(f"v_lshlrev_b32 v12, 8, v{t1}")
    a(f"s_lshl_b32 s{S_T2}, s{S_T1}, 1")
    a(f"v_xor_b32 v{t0}, s{S_T2}, v{t0}")
    a(f"v_lshl_add_u32 v12, v{t0}, 6, v12")
    a(f"v_bfe_u32 v{t1}, v0, 4, 1")
    a(f"v_lshl_add_u32 v12, v{t1}, 5, v12")
    a(f"v_bfe_u32 v{t1}, v0, 1, 1")
    a(f"v_lshl_add_u32 v12, v{t1}, 4, v12")
    a(f"v_and_b32 v{t1}, 1, v0")
    a(f"v_lshl_add_u32 v12, v{t1}, 3, v12")
    a(f"v_add_u32 v12, {WOFF}, v12")
    a(f"v_xor_b32 v13, 64, v12")
    a(f"v_lshrrev_b32 v{t0}, 4, v0")
    a(f"v_lshlrev_b32 v{t1}, 2, v{t0}")
    a(f"v_and_b32 v{t3}, 15, v0")
    a(f"v_xor_b32 v{t1}, v{t1}, v{t3}")
    a(f"v_lshlrev_b32 v{t1}, 4, v{t1}")
    a(f"s_lshl_b32 s{S_T2}, s{S_G}, 4")
    a(f"v_add_u32 v{t0}, s{S_T2}, v{t0}")
    a(f"v_mul_u32_u24 v{t0}, 3584, v{t0}")
    a(f"v_add_u32 v14, v{t0}, v{t1}")
    a(f"s_lshl_b32 s{S_T2}, s{S_M}, 8")
    a(f"v_add_u32 v14, s{S_T2}, v14")
    a(f"s_lshl_b32 s30, s{S_G}, 12")
    a(f"s_add_u32 s30, s30, {WOFF}")

def emit_G_dma(a, s):
    slot = (s % 4) * SLOT
    for i in range(4):
        a(f"s_add_u32 m0, s30, {slot + i*1024}")
        a(f"s_mov_b32 s{S_T0}, {(s*64 + 4*i)*3584}")
        a(f"buffer_load_dwordx4 v14, {sr(S_W,4)}, s{S_T0} offen lds")

def emit_G_reads(a, ks, buf):
    for t in range(2):
        w = G_WB + 8*buf + 4*t
        a(f"ds_read_b64_tr_b16 {vr(w,2)}, v{12+t} offset:{ks*4096}")
        a(f"ds_read_b64_tr_b16 {vr(w+2,2)}, v{12+t} offset:{ks*4096+1024}")
    for t in range(2):
        a(f"ds_read_b128 {vr(G_XB + 8*buf + 4*t,4)}, v{8+ks} offset:{t*4096}")

def emit_G_gemm(a):
    for s in range(3): emit_G_dma(a, s)
    for s in range(NSTAGE):
        inflight = min(2, NSTAGE - 1 - s)
        a(f"s_waitcnt vmcnt({4*inflight})")
        a("s_barrier")
        emit_G_reads(a, 0, 0)
        if s + 3 < NSTAGE: emit_G_dma(a, s + 3)
        for ks in range(4):
            buf = ks & 1
            if ks < 3:
                emit_G_reads(a, ks + 1, buf ^ 1)
                a("s_waitcnt lgkmcnt(6)")
            else:
                a("s_waitcnt lgkmcnt(0)")
            for nt in range(2):
                for tt in range(2):
                    acc = G_ACC + 16*(2*nt + tt)
                    c = "0" if (s == 0 and ks == 0) else vr(acc,16)
                    a(f"v_mfma_f32_32x32x16_bf16 {vr(acc,16)}, {vr(G_WB+8*buf+4*nt,4)}, {vr(G_XB+8*buf+4*tt,4)}, {c}")
        if s + 1 < NSTAGE:
            d = SLOT if (s + 1) % 4 else -3 * SLOT
            for r in (8, 9, 10, 11, 12, 13):
                a(f"v_add_u32 v{r}, {hex(d & 0xffffffff)}, v{r}")

def emit_G_silu_store(a):
    t = 16
    a(f"v_lshlrev_b32 v8, 4, v0")
    a(f"s_and_b32 s{S_T0}, s{S_G}, 1")
    a(f"s_lshl_b32 s{S_T0}, s{S_T0}, 1")
    a(f"s_lshl_b32 s{S_T1}, s{S_GR}, 2")
    a(f"s_add_u32 s{S_T0}, s{S_T0}, s{S_T1}")
    a(f"s_mul_i32 s{S_T0}, s{S_T0}, 112")
    a(f"s_lshl_b32 s{S_T1}, s{S_M}, 3")
    a(f"s_add_u32 s{S_T0}, s{S_T0}, s{S_T1}")
    a(f"s_lshr_b32 s{S_T1}, s{S_G}, 1")
    a(f"s_lshl_b32 s{S_T1}, s{S_T1}, 2")
    a(f"s_add_u32 s{S_T0}, s{S_T0}, s{S_T1}")
    a(f"s_lshl_b32 s{S_T0}, s{S_T0}, 10")
    a(f"s_add_u32 s{S_T0}, s{S_T0}, {HF}")
    a(f"s_mov_b32 s{S_T2}, {hexf(-LOG2E)}")
    for nt in range(2):
        for tt in range(2):
            acc = G_ACC + 16*(2*nt + tt)
            tmp = 32 if (2*nt + tt) % 2 == 0 else 48
            for i in range(16): a(f"v_mul_f32 v{tmp+i}, s{S_T2}, v{acc+i}")
            for i in range(16): a(f"v_exp_f32 v{tmp+i}, v{tmp+i}")
            for i in range(16): a(f"v_add_f32 v{tmp+i}, 1.0, v{tmp+i}")
            for i in range(16): a(f"v_rcp_f32 v{tmp+i}, v{tmp+i}")
            for i in range(16): a(f"v_mul_f32 v{tmp+i}, v{acc+i}, v{tmp+i}")
            for i in range(8): a(f"v_cvt_pk_bf16_f32 v{acc+i}, v{tmp+2*i}, v{tmp+2*i+1}")
            for hf in range(2):
                off = (tt*112 + 2*nt + hf) * 1024
                a(f"s_add_u32 s{S_T1}, s{S_T0}, {off}")
                a(f"buffer_store_dwordx4 {vr(acc+4*hf,4)}, v8, {sr(S_WS,4)}, s{S_T1} offen")

KV_ACC = 64
WVOFF = WOFF + 2048 + 128
def emit_KV_setup(a):
    t0, t1, t2, t3 = 16, 17, 18, 19
    a(f"s_sub_u32 s{S_T0}, s{S_M}, 14")
    a(f"s_lshl_b32 s{S_T0}, s{S_T0}, 2")
    a(f"s_add_u32 s{S_T0}, s{S_T0}, s{S_G}")
    a(f"s_mov_b32 s29, s{S_T0}")
    a(f"v_and_b32 v{t0}, 15, v0")
    a(f"v_lshrrev_b32 v{t1}, 1, v{t0}")
    a(f"v_lshrrev_b32 v{t2}, 4, v0")
    a(f"v_xor_b32 v{t3}, v{t2}, v{t1}")
    a(f"v_lshlrev_b32 v{t3}, 4, v{t3}")
    a(f"v_lshl_add_u32 v8, v{t0}, 7, v{t3}")
    a(f"s_lshl_b32 s{S_T1}, s{S_T0}, 11")
    a(f"v_add_u32 v8, s{S_T1}, v8")
    a(f"v_xor_b32 v9, 64, v8")
    a(f"v_lshrrev_b32 v{t1}, 2, v{t0}")
    a(f"v_lshl_add_u32 v{t1}, v{t2}, 3, v{t1}")
    a(f"v_lshlrev_b32 v10, 5, v{t1}")
    a(f"v_and_b32 v{t1}, 3, v0")
    a(f"v_lshl_add_u32 v10, v{t1}, 3, v10")
    a(f"v_add_u32 v10, {WOFF}, v10")
    a(f"v_lshlrev_b32 v11, 4, v{t2}")
    a(f"v_add_u32 v11, {GATE_LDS}, v11")
    a(f"v_lshlrev_b32 v14, 4, v0")
    a(f"s_and_b32 s{S_T1}, s{S_G}, 1")
    a(f"s_lshl_b32 s{S_T1}, s{S_T1}, 10")
    a(f"v_add_u32 v14, s{S_T1}, v14")
    a(f"s_lshr_b32 s{S_T2}, s{S_G}, 1")
    a(f"s_mul_i32 s{S_T2}, s{S_T2}, {WVOFF - WOFF}")
    a(f"s_add_u32 s30, s{S_T1}, s{S_T2}")
    a(f"s_add_u32 s30, s30, {WOFF}")

def emit_KV_dma(a, s):
    slot = (s % 4) * SLOT
    a(f"s_add_u32 m0, s30, {slot}")
    a(f"s_mov_b32 s{S_T0}, {s*2048}")
    a(f"buffer_load_dwordx4 v14, {sr(S_W,4)}, s{S_T0} offen lds")

def emit_KV_gemm(a, S_GATE):
    X, WK, WV, GW = 32, 40, 48, 56
    a(f"v_lshlrev_b32 v15, 4, v0")
    a(f"s_mov_b32 m0, {GATE_LDS}")
    a(f"s_mov_b32 s{S_T0}, 0")
    a(f"buffer_load_dwordx4 v15, {sr(S_GATE,4)}, s{S_T0} offen lds")
    for s in range(3): emit_KV_dma(a, s)
    for s in range(NSTAGE):
        inflight = min(2, NSTAGE - 1 - s)
        a(f"s_waitcnt vmcnt({inflight})")
        a("s_barrier")
        if s + 3 < NSTAGE: emit_KV_dma(a, s + 3)
        for s2 in range(2):
            a(f"ds_read_b128 {vr(X+4*s2,4)}, v{8+s2}")
            a(f"ds_read_b64_tr_b16 {vr(WK+4*s2,2)}, v10 offset:{s2*1024}")
            a(f"ds_read_b64_tr_b16 {vr(WK+4*s2+2,2)}, v10 offset:{s2*1024+128}")
            a(f"ds_read_b64_tr_b16 {vr(WV+4*s2,2)}, v10 offset:{WVOFF-WOFF+s2*1024}")
            a(f"ds_read_b64_tr_b16 {vr(WV+4*s2+2,2)}, v10 offset:{WVOFF-WOFF+s2*1024+128}")
            a(f"ds_read_b128 {vr(GW+4*s2,4)}, v11 offset:{s*128+s2*64}")
        a("s_waitcnt lgkmcnt(0)")
        for s2 in range(2):
            z = (s == 0 and s2 == 0)
            A = KV_ACC
            a(f"v_mfma_f32_16x16x32_bf16 {vr(A,4)}, {vr(WK+4*s2,4)}, {vr(X+4*s2,4)}, {'0' if z else vr(A,4)}")
            a(f"v_mfma_f32_16x16x32_bf16 {vr(A+4,4)}, {vr(X+4*s2,4)}, {vr(WV+4*s2,4)}, {'0' if z else vr(A+4,4)}")
            a(f"v_mfma_f32_16x16x32_bf16 {vr(A+8,4)}, {vr(GW+4*s2,4)}, {vr(X+4*s2,4)}, {'0' if z else vr(A+8,4)}")
        if s + 1 < NSTAGE:
            d = SLOT if (s + 1) % 4 else -3 * SLOT
            for r in (8, 9, 10):
                a(f"v_add_u32 v{r}, {hex(d & 0xffffffff)}, v{r}")

def emit_KV_store(a, cache=""):
    t0, t1, t2, t3 = 16, 17, 18, 19
    A = KV_ACC
    a(f"s_lshl_b32 s{S_T0}, s{S_GR}, 3")
    a(f"s_add_u32 s{S_T0}, s{S_T0}, s29")
    a(f"s_lshr_b32 s{S_T1}, s{S_T0}, 1")
    a(f"s_lshl_b32 s{S_T1}, s{S_T1}, 11")
    a(f"s_add_u32 s{S_T1}, s{S_T1}, {KVF}")
    a(f"s_and_b32 s{S_T2}, s{S_T0}, 1")
    a(f"v_and_b32 v{t0}, 15, v0")
    a(f"v_lshrrev_b32 v{t2}, 4, v0")
    a(f"v_lshrrev_b32 v{t1}, 1, v{t2}")
    a(f"v_lshlrev_b32 v8, 9, v{t1}")
    a(f"v_lshl_add_u32 v8, v{t0}, 4, v8")
    a(f"v_and_b32 v{t3}, 1, v{t2}")
    a(f"v_lshl_add_u32 v8, v{t3}, 3, v8")
    a(f"s_lshl_b32 s{S_T3}, s{S_T2}, 8")
    a(f"v_add_u32 v8, s{S_T3}, v8")
    a(f"v_lshlrev_b32 v9, 8, v{t3}")
    a(f"v_lshl_add_u32 v9, v{t0}, 4, v9")
    a(f"v_lshl_add_u32 v9, v{t1}, 3, v9")
    a(f"s_lshl_b32 s{S_T3}, s{S_T2}, 9")
    a(f"s_add_u32 s{S_T3}, s{S_T3}, 1024")
    a(f"v_add_u32 v9, s{S_T3}, v9")
    a(f"v_lshlrev_b32 v10, 2, v{t0}")
    a(f"s_lshl_b32 s{S_T0}, s{S_T0}, 6")
    a(f"s_add_u32 s{S_T0}, s{S_T0}, {GATE}")
    a(f"v_cvt_pk_bf16_f32 v32, v{A}, v{A+1}")
    a(f"v_cvt_pk_bf16_f32 v33, v{A+2}, v{A+3}")
    a(f"v_cvt_pk_bf16_f32 v34, v{A+4}, v{A+5}")
    a(f"v_cvt_pk_bf16_f32 v35, v{A+6}, v{A+7}")
    a(f"buffer_store_dwordx2 v[32:33], v8, {sr(S_WS,4)}, s{S_T1} offen {cache}")
    a(f"buffer_store_dwordx2 v[34:35], v9, {sr(S_WS,4)}, s{S_T1} offen {cache}")
    a(f"v_mul_f32 v36, {hexf(-LOG2E)}, v{A+8}")
    a(f"v_exp_f32 v36, v36")
    a(f"v_add_f32 v36, 1.0, v36")
    a(f"v_rcp_f32 v36, v36")
    a(f"buffer_store_dword v36, v10, {sr(S_WS,4)}, s{S_T0} offen {cache}")

def kernel_A(label):
    a = Asm()
    wg_decode(a, S_GR, S_M, f"{label}_exit")
    srd(a, S_X, 'x', 2048*1024)
    srd(a, S_WQ, 'wq', 512*1024)
    srd(a, S_WS, 'ws', WS_BYTES)
    wave_id(a, S_WAVE, 1)
    a(f"s_cmp_ge_u32 s{S_WAVE}, 8")
    a(f"s_cbranch_scc1 {label}_G")
    a("s_waitcnt lgkmcnt(0)")
    emit_A_setup(a)
    emit_A_gemm(a)
    emit_A_qfrag(a, 40)
    a(f"s_and_b32 s{S_T0}, s{S_WAVE}, 3")
    a(f"s_lshl_b32 s{S_T1}, s{S_GR}, 2")
    a(f"s_add_u32 s{S_T0}, s{S_T0}, s{S_T1}")
    a(f"s_lshl_b32 s{S_T0}, s{S_T0}, 5")
    a(f"s_lshl_b32 s{S_T1}, s{S_M}, 1")
    a(f"s_add_u32 s{S_T0}, s{S_T0}, s{S_T1}")
    a(f"s_lshr_b32 s{S_T1}, s{S_WAVE}, 2")
    a(f"s_add_u32 s{S_T0}, s{S_T0}, s{S_T1}")
    a(f"s_lshl_b32 s{S_T0}, s{S_T0}, 10")
    a(f"s_add_u32 s{S_T0}, s{S_T0}, {QF}")
    a(f"v_lshlrev_b32 v8, 4, v0")
    a(f"buffer_store_dwordx4 v[40:43], v8, {sr(S_WS,4)}, s{S_T0} offen")
    a("s_endpgm")
    a.label(f"{label}_G")
    a(f"s_sub_u32 s{S_G}, s{S_WAVE}, 8")
    a(f"s_cmp_ge_u32 s{S_M}, 14")
    a(f"s_cbranch_scc1 {label}_KV")
    srd(a, S_W, 'w1', 512*3584)
    a("s_waitcnt lgkmcnt(0)")
    emit_G_setup(a)
    emit_G_gemm(a)
    emit_G_silu_store(a)
    a("s_endpgm")
    a.label(f"{label}_KV")
    a(f"s_load_dwordx2 s[32:33], s[0:1], {KA['wk']}")
    a(f"s_load_dwordx2 s[34:35], s[0:1], {KA['wv']}")
    srd(a, 36, 'gate', 1024)
    a("s_waitcnt lgkmcnt(0)")
    a(f"s_cmp_lt_u32 s{S_G}, 2")
    a(f"s_cselect_b32 s{S_W}, s32, s34")
    a(f"s_cselect_b32 s{S_W+1}, s33, s35")
    a(f"s_mov_b32 s{S_W+2}, {512*32}")
    a(f"s_mov_b32 s{S_W+3}, 0x00020000")
    emit_KV_setup(a)
    emit_KV_gemm(a, 36)
    emit_KV_store(a)
    a.label(f"{label}_exit")
    a("s_endpgm")
    return a.render()
```

```python
from common import *
import phase0, attn, ffn2
hdr = open('cdna_kernels/' + NAME + '.s.ref').read().split('; Override launch')[0]
s = hdr
s += "; @launch kernel=proj_kernel grid=(256,1,1) block=(768,1,1) lds=163840\n"
s += "; @launch kernel=attn_kernel grid=(256,1,1) block=(512,1,1) lds=131072\n"
s += "; @launch kernel=final_kernel grid=(256,1,1) block=(256,1,1) lds=98304\n"
s += '.amdgcn_target "amdgcn-amd-amdhsa--gfx950"\n'
s += kernel_head("proj_kernel") + phase0.kernel_A("proj_kernel")
s += kernel_head("attn_kernel") + attn.kernel_B("attn_kernel")
s += kernel_head("final_kernel") + ffn2.kernel_C("final_kernel")
s += descriptor("proj_kernel", 168) + descriptor("attn_kernel", 168) + descriptor("final_kernel", 168)
import sys
out = sys.argv[1] if len(sys.argv) > 1 else 'v1.s'
open(out, 'w').write(s)
print("wrote", out, len(s))
```

```python
from common import *

QR   = 4
KA_, VA_ = 8, 9
KB   = [12, 16]
VB   = [20, 28]
SB   = [36, 52]
PB   = [68, 76]
OA   = 84
CB   = 100
TMP  = 116
GATEV = 132
S_EXLO = 40
S_LOOP, S_PASS = 42, 43
UNROLL = 8

def mf32(d, a_, b_, c): return f"v_mfma_f32_32x32x16_bf16 {vr(d,16)}, {vr(a_,4)}, {vr(b_,4)}, {c}"
def qk(kb):  return mf32(SB[kb % 2], KB[kb % 2], QR, vr(CB, 16))
def pv(kb, m): return mf32(OA, VB[kb % 2] + 4*m, PB[kb % 2] + 4*m, vr(OA, 16))
def ex(kb, i): return f"v_exp_f32 v{SB[kb % 2]+i}, v{SB[kb % 2]+i}"
def cv(kb, i): return f"v_cvt_pk_bf16_f32 v{PB[kb % 2]+i}, v{SB[kb % 2]+2*i}, v{SB[kb % 2]+2*i+1}"
def rdK(kb, rel): return f"ds_read_b128 {vr(KB[kb % 2],4)}, v{KA_} offset:{rel*2048}"
def rdV(kb, rel): return [f"s_mov_b64 exec, s[{S_EXLO}:{S_EXLO+1}]",
                          f"ds_read_b128 {vr(VB[kb % 2],4)}, v{VA_} offset:{rel*2048+1024}",
                          f"ds_read_b128 {vr(VB[kb % 2]+4,4)}, v{VA_} offset:{rel*2048+1536}",
                          "s_mov_b64 exec, -1"]

def emit_attn_setup(a, lds_base=0):
    a(f"v_lshlrev_b32 v{KA_}, 4, v0")
    if lds_base: a(f"v_add_u32 v{KA_}, {lds_base}, v{KA_}")
    a(f"v_and_b32 v{TMP}, 15, v0")
    a(f"v_lshlrev_b32 v{TMP}, 4, v{TMP}")
    a(f"v_lshrrev_b32 v{TMP+1}, 5, v0")
    a(f"v_lshl_add_u32 v{VA_}, v{TMP+1}, 8, v{TMP}")
    if lds_base: a(f"v_add_u32 v{VA_}, {lds_base}, v{VA_}")
    a(f"s_mov_b32 s{S_EXLO}, 0x0000ffff")
    a(f"s_mov_b32 s{S_EXLO+1}, 0x0000ffff")
    a(f"v_and_b32 v{TMP}, 27, v0")
    a(f"v_cmp_eq_u32 vcc, 16, v{TMP}")
    a(f"v_mov_b32 v{TMP+1}, 0x3f803f80")
    a(f"v_cndmask_b32 v{TMP}, 0, v{TMP+1}, vcc")
    for b in range(2):
        for i in range(8): a(f"v_mov_b32 v{VB[b]+i}, v{TMP}")

def emit_pass_init(a):
    for i in range(16): a(f"v_mov_b32 v{OA+i}, 0")
    for i in range(8): a(f"v_mov_b32 v{PB[1]+i}, 0")
    a(f"v_mov_b32 v{SB[1]+14}, 0")
    a(f"v_mov_b32 v{SB[1]+15}, 0")
    a(rdK(0, 0)); a(rdK(1, 1))
    for l in rdV(0, 0): a(l)
    a("s_waitcnt lgkmcnt(3)")
    a(qk(0))
    a(rdK(2, 2))
    for l in rdV(1, 0): a(l)

def emit_step(a, kb, last_iter_static=False):
    for i in range(8):
        a(ex(kb, 2*i)); a(ex(kb, 2*i+1))
        a(cv(kb-1, 7) if i == 0 else cv(kb, i-1))
        if i == 1:
            a("s_waitcnt lgkmcnt(3)")
            a(qk(kb+1))
            a(rdK(kb+1, kb+3))
        if i == 3: a(pv(kb-1, 0))
        if i == 6:
            a(pv(kb-1, 1))
            for l in rdV(kb+1, kb+1): a(l)

def emit_attn_loop(a, label):
    a(f"s_mov_b32 s{S_LOOP}, {64 // UNROLL}")
    a.label(f"{label}_loop")
    for kb in range(UNROLL): emit_step(a, kb)
    a(f"v_add_u32 v{KA_}, {UNROLL*2048}, v{KA_}")
    a(f"v_add_u32 v{VA_}, {UNROLL*2048}, v{VA_}")
    a(f"s_sub_u32 s{S_LOOP}, s{S_LOOP}, 1")
    a(f"s_cmp_lg_u32 s{S_LOOP}, 0")
    a(f"s_cbranch_scc1 {label}_loop")
    a(cv(63, 7))
    a("s_waitcnt lgkmcnt(0)")
    a(pv(63, 0)); a(pv(63, 1))
    a(f"v_subrev_u32 v{KA_}, {64*2048}, v{KA_}")
    a(f"v_subrev_u32 v{VA_}, {64*2048}, v{VA_}")

def emit_maxpass(a, label):
    M = TMP
    a(f"v_mov_b32 v{M}, 0xff800000")
    a(f"v_mov_b32 v{M+1}, v{KA_}")
    a(f"s_mov_b32 s{S_LOOP}, 64")
    a.label(f"{label}_mx")
    a(f"ds_read_b128 {vr(KB[0],4)}, v{M+1}")
    a(f"v_add_u32 v{M+1}, 2048, v{M+1}")
    a("s_waitcnt lgkmcnt(0)")
    a(mf32(SB[0], KB[0], QR, "0"))
    for i in range(8):
        a(f"v_max3_f32 v{M}, v{M}, v{SB[0]+2*i}, v{SB[0]+2*i+1}")
    a(f"s_sub_u32 s{S_LOOP}, s{S_LOOP}, 1")
    a(f"s_cmp_lg_u32 s{S_LOOP}, 0")
    a(f"s_cbranch_scc1 {label}_mx")
    a(f"v_mov_b32 v{M+1}, v{M}")
    a(f"v_permlane32_swap_b32 v{M}, v{M+1}")
    a(f"v_max_f32 v{M}, v{M}, v{M+1}")
    for i in range(16): a(f"v_sub_f32 v{CB+i}, 0, v{M}")

def emit_attention(a, label):
    for i in range(16): a(f"v_mov_b32 v{CB+i}, 0")
    a(f"s_mov_b32 s{S_PASS}, 0")
    a.label(f"{label}_pass")
    emit_pass_init(a)
    emit_attn_loop(a, label)
    a(f"s_cmp_lg_u32 s{S_PASS}, 0")
    a(f"s_cbranch_scc1 {label}_done")
    a("s_nop 7")
    a(f"v_mov_b32 v{TMP}, {hexf(2.0**-64)}")
    a(f"v_mov_b32 v{TMP+1}, {hexf(2.0**64)}")
    a(f"v_cmp_ge_f32 s[44:45], v{OA+8}, v{TMP}")
    a(f"v_cmp_le_f32 s[46:47], v{OA+8}, v{TMP+1}")
    a(f"s_and_b64 s[44:45], s[44:45], s[46:47]")
    a(f"v_mov_b32 v{TMP}, 0x7f800000")
    for i in range(8):
        a(f"v_cmp_lt_f32 s[46:47], abs(v{OA+i}), v{TMP}")
        a(f"s_and_b64 s[44:45], s[44:45], s[46:47]")
    a(f"s_cmp_eq_u64 s[44:45], exec")
    a(f"s_cbranch_scc1 {label}_done")
    emit_maxpass(a, label)
    a(f"s_mov_b32 s{S_PASS}, 1")
    a(f"s_branch {label}_pass")
    a.label(f"{label}_done")

def emit_o_frag(a, dst):
    a("s_nop 7")
    a(f"v_rcp_f32 v{TMP}, v{OA+8}")
    a(f"v_mul_f32 v{TMP}, v{TMP}, v{GATEV}")
    for i in range(8): a(f"v_mul_f32 v{OA+i}, v{OA+i}, v{TMP}")
    for i in range(4): a(f"v_cvt_pk_bf16_f32 v{dst+i}, v{OA+2*i}, v{OA+2*i+1}")

def kernel_B(label):
    S_WS, S_WAVE, S_GR, S_M, T0, T1 = 4, 20, 21, 22, 24, 25
    a = Asm()
    diag_start(a)
    wg_decode(a, S_GR, S_M, f"{label}_exit")
    srd(a, S_WS, 'ws', WS_BYTES)
    wave_id(a, S_WAVE, 1)
    a("s_waitcnt lgkmcnt(0)")
    a(f"v_lshlrev_b32 v2, 4, v0")
    a(f"s_lshl_b32 s{T0}, s{S_WAVE}, 10")
    a(f"s_add_u32 s{T1}, s{T0}, {KVF}")
    for i in range(16):
        a(f"s_add_u32 m0, s{T0}, {i*8192}")
        a(f"s_add_u32 s26, s{T1}, {i*8192}")
        a(f"buffer_load_dwordx4 v2, {sr(S_WS,4)}, s26 offen lds")
    a(f"s_and_b32 s{T0}, s{S_WAVE}, 3")
    a(f"s_lshl_b32 s{T1}, s{S_GR}, 2")
    a(f"s_add_u32 s{T0}, s{T0}, s{T1}")
    a(f"s_lshl_b32 s27, s{T0}, 7")
    a(f"s_add_u32 s27, s27, {GATE}")
    a(f"s_lshl_b32 s{T0}, s{T0}, 5")
    a(f"s_lshl_b32 s{T1}, s{S_M}, 1")
    a(f"s_add_u32 s{T0}, s{T0}, s{T1}")
    a(f"s_lshr_b32 s{T1}, s{S_WAVE}, 2")
    a(f"s_add_u32 s{T0}, s{T0}, s{T1}")
    a(f"s_lshl_b32 s{T0}, s{T0}, 10")
    a(f"s_add_u32 s28, s{T0}, {QF}")
    a(f"s_add_u32 s29, s{T0}, {OF}")
    a(f"buffer_load_dwordx4 {vr(QR,4)}, v2, {sr(S_WS,4)}, s28 offen")
    a(f"v_and_b32 v3, 31, v0")
    a(f"v_lshlrev_b32 v3, 2, v3")
    a(f"buffer_load_dword v{GATEV}, v3, {sr(S_WS,4)}, s27 offen")
    emit_attn_setup(a)
    a("s_waitcnt vmcnt(0)")
    a("s_barrier")
    diag_mark(a, 0)
    emit_attention(a, label)
    diag_mark(a, 1)
    emit_o_frag(a, TMP+4)
    a(f"buffer_store_dwordx4 {vr(TMP+4,4)}, v2, {sr(S_WS,4)}, s29 offen")
    diag_end(a, 1, S_WS, S_WAVE)
    a.label(f"{label}_exit")
    a("s_endpgm")
    return a.render()
```

```python
from asmlib import *
NAME = "gated_mix__grouped_kv_mqa__dense_activation_silu__prompt"
QF, KVF, GATE, HF, OF, FLAGS = 0x000000, 0x200000, 0x220000, 0x300000, 0xA00000, 0xC00000
WS_BYTES = 0x1000000
LOG2E = 1.4426950408889634
import struct
def f32(x): return struct.unpack('<I', struct.pack('<f', x))[0]
def hexf(x): return hex(f32(x))

KA = dict(x=0, wq=8, wk=16, wv=24, wo=32, bx=40, w1=48, w2=56, gate=64, out=72, dbg=80, ws=88)

def srd(a, s, ptr, nbytes):
    a(f"s_load_dwordx2 {sr(s,2)}, s[0:1], {KA[ptr]}")
    a(f"s_mov_b32 s{s+2}, {hex(nbytes)}")
    a(f"s_mov_b32 s{s+3}, 0x00020000")

def wg_decode(a, s_gr, s_m, exit_label):
    a(f"s_cmp_ge_u32 s2, 256")
    a(f"s_cbranch_scc1 {exit_label}")
    a(f"s_and_b32 s{s_gr}, s2, 7")
    a(f"s_lshl_b32 s{s_gr}, s{s_gr}, 1")
    a(f"s_lshr_b32 s{s_m}, s2, 7")
    a(f"s_add_u32 s{s_gr}, s{s_gr}, s{s_m}")
    a(f"s_lshr_b32 s{s_m}, s2, 3")
    a(f"s_and_b32 s{s_m}, s{s_m}, 15")

def wave_id(a, s_w, vtmp):
    a(f"v_lshrrev_b32 {vr(vtmp)}, 6, v0")
    a(f"v_readfirstlane_b32 s{s_w}, {vr(vtmp)}")
    a(f"v_and_b32 v0, 63, v0")

def descriptor(name, vgpr, sgpr=102):
    return f""".section .rodata,"a"
.p2align 6
.amdhsa_kernel {name}
  .amdhsa_next_free_vgpr {vgpr}
  .amdhsa_next_free_sgpr {sgpr}
  .amdhsa_accum_offset {((vgpr+3)//4)*4}
  .amdhsa_group_segment_fixed_size 0
  .amdhsa_kernarg_size 96
  .amdhsa_user_sgpr_count 2
  .amdhsa_user_sgpr_kernarg_segment_ptr 1
  .amdhsa_system_sgpr_workgroup_id_x 1
  .amdhsa_float_denorm_mode_32 3
.end_amdhsa_kernel
"""

def kernel_head(label):
    return f""".text
.globl {label}
.p2align 8
.type {label},@function
{label}:
"""

DIAG = 0xD00000
import os
DIAG_ON = os.environ.get("DIAG", "0") == "1"
def diag_start(a):
    if not DIAG_ON: return
    a("s_memrealtime s[90:91]")
    a("s_memtime s[92:93]")
def diag_mark(a, idx):
    if not DIAG_ON: return
    a(f"s_memrealtime s[{80+2*idx}:{81+2*idx}]")
def diag_end(a, kidx, s_ws, s_wave):
    if not DIAG_ON: return
    a("s_waitcnt vmcnt(0) lgkmcnt(0)")
    a("s_memrealtime s[94:95]")
    a("s_memtime s[96:97]")
    a("s_waitcnt lgkmcnt(0)")
    a(f"s_lshl_b32 s98, s2, 4")
    a(f"s_add_u32 s98, s98, s{s_wave}")
    a(f"s_lshl_b32 s98, s98, 6")
    a(f"s_add_u32 s98, s98, {DIAG + kidx*0x40000}")
    for i, r in enumerate((90, 91, 94, 95)): a(f"v_mov_b32 v{8+i}, s{r}")
    a("s_sub_u32 s96, s96, s92")
    for i, r in enumerate((96, 80, 82, 84)): a(f"v_mov_b32 v{12+i}, s{r}")
    a("v_mov_b32 v16, 0")
    a(f"buffer_store_dwordx4 v[8:11], v16, {sr(s_ws,4)}, s98 offen")
    a(f"buffer_store_dwordx4 v[12:15], v16, {sr(s_ws,4)}, s98 offen offset:16")
```

```python
from common import *

ACC  = 64
AB   = [32, 40]
DEPTH = 4
BB   = [128, 136, 144, 152]
V_LIN, V_DW, V_A0, V_A1 = 8, 9, 10, 11
V_G0, V_G1 = 12, 13
RING_STAGE = 2048
S_WS, S_W2, S_WO, S_OUT = 4, 8, 12, 16
S_G, S_GR, S_M = 28, 21, 22
T0, T1, T2, T3 = 24, 25, 26, 27
S_RING, S_HB, S_OB, S_WB2, S_WBO = 30, 31, 32, 33, 34

def emit_setup(a, ring_base):
    t0, t1, t2 = 16, 17, 18
    a(f"v_lshlrev_b32 v{V_LIN}, 4, v0")
    a(f"v_lshrrev_b32 v{t0}, 3, v0")
    a(f"v_bfe_u32 v{t1}, v0, 4, 1")
    a(f"v_lshlrev_b32 v{t1}, 2, v{t1}")
    a(f"v_and_b32 v{t2}, 7, v0")
    a(f"v_xor_b32 v{t1}, v{t1}, v{t2}")
    a(f"v_lshlrev_b32 v{t1}, 4, v{t1}")
    a(f"v_lshl_add_u32 v{V_DW}, v{t0}, 10, v{t1}")
    a(f"s_lshr_b32 s{T0}, s{S_M}, 1")
    a(f"s_lshl_b32 s{T0}, s{T0}, 7")
    a(f"v_add_u32 v{V_DW}, s{T0}, v{V_DW}")
    a(f"s_lshl_b32 s{S_RING}, s{S_G}, 13")
    if ring_base: a(f"s_add_u32 s{S_RING}, s{S_RING}, {ring_base}")
    a(f"v_bfe_u32 v{t0}, v0, 2, 2")
    a(f"v_lshrrev_b32 v{t1}, 5, v0")
    a(f"v_lshl_add_u32 v{t1}, v{t1}, 2, v{t0}")
    a(f"v_lshlrev_b32 v{V_A0}, 7, v{t1}")
    a(f"v_lshrrev_b32 v{t0}, 1, v{t0}")
    a(f"v_lshl_add_u32 v{V_A0}, v{t0}, 6, v{V_A0}")
    a(f"v_bfe_u32 v{t1}, v0, 4, 1")
    a(f"v_lshl_add_u32 v{V_A0}, v{t1}, 5, v{V_A0}")
    a(f"v_bfe_u32 v{t1}, v0, 1, 1")
    a(f"v_lshl_add_u32 v{V_A0}, v{t1}, 4, v{V_A0}")
    a(f"v_and_b32 v{t1}, 1, v0")
    a(f"v_lshl_add_u32 v{V_A0}, v{t1}, 3, v{V_A0}")
    a(f"v_add_u32 v{V_A0}, s{S_RING}, v{V_A0}")
    a(f"v_xor_b32 v{V_A1}, 64, v{V_A0}")
    a(f"s_and_b32 s{T0}, s{S_M}, 1")
    a(f"s_lshl_b32 s{T0}, s{T0}, 1")
    a(f"s_lshl_b32 s{T1}, s{S_GR}, 2")
    a(f"s_add_u32 s{T0}, s{T0}, s{T1}")
    a(f"s_mul_i32 s{T1}, s{T0}, 112")
    a(f"s_mul_i32 s{T2}, s{S_G}, 28")
    a(f"s_add_u32 s{T1}, s{T1}, s{T2}")
    a(f"s_lshl_b32 s{S_HB}, s{T1}, 10")
    a(f"s_add_u32 s{S_HB}, s{S_HB}, {HF}")
    a(f"s_lshl_b32 s{T1}, s{T0}, 5")
    a(f"s_lshl_b32 s{T2}, s{S_G}, 3")
    a(f"s_add_u32 s{T1}, s{T1}, s{T2}")
    a(f"s_lshl_b32 s{S_OB}, s{T1}, 10")
    a(f"s_add_u32 s{S_OB}, s{S_OB}, {OF}")
    a(f"s_mul_i32 s{S_WB2}, s{S_G}, {28*16*1024}")
    a(f"s_lshl_b32 s{S_WBO}, s{S_G}, 17")
    a(f"s_lshl_b32 s{T1}, s{T0}, 7")
    a(f"s_add_u32 s{T1}, s{T1}, {GATE}")
    a(f"v_and_b32 v{t0}, 31, v0")
    a(f"v_lshlrev_b32 v{t0}, 2, v{t0}")
    return t0, T1

def issue(a, j, which, sc=""):
    slot = j % DEPTH
    loc = j if which == 'h' else j - 28
    wsrd, wbase = (S_W2, S_WB2) if which == 'h' else (S_WO, S_WBO)
    abase, astride = (S_HB, 112*1024) if which == 'h' else (S_OB, 32*1024)
    for i in range(2):
        a(f"s_add_u32 m0, s{S_RING}, {slot*RING_STAGE + i*1024}")
        a(f"s_add_u32 s{T2}, s{wbase}, {(loc*16 + 8*i)*1024}")
        a(f"buffer_load_dwordx4 v{V_DW}, {sr(wsrd,4)}, s{T2} offen lds")
    for tt in range(2):
        a(f"s_add_u32 s{T2}, s{abase}, {loc*1024 + tt*astride}")
        a(f"buffer_load_dwordx4 {vr(BB[slot]+4*tt,4)}, v{V_LIN}, {sr(S_WS,4)}, s{T2} offen {sc}")

def reads(a, j):
    slot = j % DEPTH; buf = j & 1
    for nt in range(2):
        w = AB[buf] + 4*nt
        a(f"ds_read_b64_tr_b16 {vr(w,2)}, v{V_A0+nt} offset:{slot*RING_STAGE}")
        a(f"ds_read_b64_tr_b16 {vr(w+2,2)}, v{V_A0+nt} offset:{slot*RING_STAGE+1024}")

def mfmas(a, j, first):
    slot = j % DEPTH; buf = j & 1
    for nt in range(2):
        for tt in range(2):
            acc = ACC + 16*(2*nt + tt)
            a(f"v_mfma_f32_32x32x16_bf16 {vr(acc,16)}, {vr(AB[buf]+4*nt,4)}, {vr(BB[slot]+4*tt,4)}, {'0' if first else vr(acc,16)}")

def emit_range(a, j0, j1, which, after_first=None):
    n = j1 - j0
    a(f"s_waitcnt vmcnt({4*(min(DEPTH, n)-1)})")
    reads(a, j0)
    for j in range(j0, j1):
        rem = j1 - 1 - j
        if rem > 0:
            infl = min(DEPTH - 1, rem)
            a(f"s_waitcnt vmcnt({4*(infl-1)})")
            reads(a, j+1)
            a("s_waitcnt lgkmcnt(4)")
        else:
            a("s_waitcnt lgkmcnt(0)")
        mfmas(a, j, first=(which == 'h' and j == j0))
        if j + DEPTH < j1: issue(a, j + DEPTH, which)

def emit_scale_by_one_minus_g(a):
    a(f"v_sub_f32 v16, 1.0, v{V_G0}")
    a(f"v_sub_f32 v17, 1.0, v{V_G1}")
    for nt in range(2):
        for tt in range(2):
            acc = ACC + 16*(2*nt + tt)
            for i in range(16): a(f"v_mul_f32 v{acc+i}, v{acc+i}, v{16+tt}")

RED_ROW = 256
def emit_reduce_store(a, red_base):
    t0, t1, t2, t3 = 16, 17, 18, 19
    a(f"v_and_b32 v{t0}, 31, v0")
    a(f"v_lshrrev_b32 v{t1}, 5, v0")
    a(f"v_and_b32 v{t2}, 15, v0")
    a(f"v_xor_b32 v{t1}, v{t1}, v{t2}")
    a(f"v_lshlrev_b32 v{t1}, 4, v{t1}")
    a(f"v_lshl_add_u32 v{t0}, v{t0}, 8, v{t1}")
    a(f"s_lshl_b32 s{T0}, s{S_G}, 14")
    if red_base: a(f"s_add_u32 s{T0}, s{T0}, {red_base}")
    a(f"v_add_u32 v{t0}, s{T0}, v{t0}")
    for nt in range(2):
        for q in range(4):
            a(f"v_xor_b32 v{t3}, {(8*nt + 2*q)*16}, v{t0}")
            for tt in range(2):
                acc = ACC + 16*(2*nt + tt) + 4*q
                a(f"ds_write_b128 v{t3}, {vr(acc,4)} offset:{tt*8192}")
    a("s_waitcnt lgkmcnt(0)")
    a("s_barrier")
    a(f"v_lshrrev_b32 v{t0}, 3, v0")
    a(f"v_and_b32 v{t1}, 7, v0")
    a(f"v_lshlrev_b32 v{t1}, 1, v{t1}")
    a(f"s_lshl_b32 s{T0}, s{S_G}, 4")
    for i in range(2):
        a(f"v_add_u32 v{t2}, {8*i}, v{t0}")
        a(f"v_xor_b32 v{t3}, v{t1}, v{t2}")
        a(f"v_lshlrev_b32 v{t3}, 4, v{t3}")
        a(f"v_add_u32 v{t2}, s{T0}, v{t2}")
        a(f"v_lshl_add_u32 v{20+i}, v{t2}, 8, v{t3}")
        if red_base: a(f"v_add_u32 v{20+i}, {red_base}, v{20+i}")
        a(f"v_xor_b32 v{22+i}, 16, v{20+i}")
    for i in range(2):
        for w in range(4):
            a(f"ds_read_b128 {vr(64+32*i+8*w,4)}, v{20+i} offset:{w*16384}")
            a(f"ds_read_b128 {vr(64+32*i+8*w+4,4)}, v{22+i} offset:{w*16384}")
    a(f"s_and_b32 s{T1}, s{S_M}, 1")
    a(f"s_lshl_b32 s{T1}, s{T1}, 6")
    a(f"s_lshl_b32 s{T2}, s{S_GR}, 7")
    a(f"s_add_u32 s{T1}, s{T1}, s{T2}")
    a(f"s_add_u32 s{T1}, s{T1}, s{T0}")
    a(f"v_add_u32 v{t2}, s{T1}, v{t0}")
    a(f"v_lshlrev_b32 v{t2}, 10, v{t2}")
    a(f"v_and_b32 v{t1}, 7, v0")
    a(f"v_lshl_add_u32 v{t2}, v{t1}, 4, v{t2}")
    a(f"s_lshr_b32 s{T1}, s{S_M}, 1")
    a(f"s_lshl_b32 s{T1}, s{T1}, 7")
    for i in range(2):
        a(f"s_waitcnt lgkmcnt({8 if i == 0 else 0})")
        b = 64 + 32*i
        for e in range(8):
            a(f"v_add_f32 v{b+e}, v{b+e}, v{b+8+e}")
            a(f"v_add_f32 v{b+16+e}, v{b+16+e}, v{b+24+e}")
        for e in range(8):
            a(f"v_add_f32 v{b+e}, v{b+e}, v{b+16+e}")
        for e in range(4):
            a(f"v_cvt_pk_bf16_f32 v{32+4*i+e}, v{b+2*e}, v{b+2*e+1}")
        a(f"s_add_u32 s{T2}, s{T1}, {i*8192}")
        a(f"buffer_store_dwordx4 {vr(32+4*i,4)}, v{t2}, {sr(S_OUT,4)}, s{T2} offen")

def kernel_C(label):
    a = Asm()
    diag_start(a)
    wg_decode(a, S_GR, S_M, f"{label}_exit")
    srd(a, S_WS, 'ws', WS_BYTES)
    srd(a, S_W2, 'w2', 1792*1024)
    srd(a, S_WO, 'wo', 512*1024)
    srd(a, S_OUT, 'out', 2048*1024)
    wave_id(a, S_G, 1)
    a("s_waitcnt lgkmcnt(0)")
    vg, sg = emit_setup(a, 65536)
    a(f"buffer_load_dword v{V_G0}, v{vg}, {sr(S_WS,4)}, s{sg} offen")
    a(f"buffer_load_dword v{V_G1}, v{vg}, {sr(S_WS,4)}, s{sg} offen offset:128")
    for j in range(DEPTH): issue(a, j, 'h')
    emit_range(a, 0, 28, 'h')
    diag_mark(a, 0)
    for j in range(28, 28 + DEPTH): issue(a, j, 'o')
    emit_scale_by_one_minus_g(a)
    emit_range(a, 28, 36, 'o')
    diag_mark(a, 1)
    emit_reduce_store(a, 0)
    diag_end(a, 2, S_WS, S_G)
    a.label(f"{label}_exit")
    a("s_endpgm")
    return a.render()
```

```python
from common import *

SLOT = 36864
XOFF, WOFF, QOFF = 0, 16384, 32768
GATE_LDS = 4 * SLOT
NSTAGE = 8

S_X, S_W, S_WS, S_WQ = 4, 8, 12, 16
S_WAVE, S_GR, S_M = 20, 21, 22
S_T0, S_T1, S_T2, S_T3 = 24, 25, 26, 27
S_G = 28

def lane_fields(a):
    pass

def emit_A_setup(a):
    V_QA, V_QW, V_DX, V_DQ = 8, 10, 12, 14
    t0, t1, t2, t3 = 16, 17, 18, 19
    a(f"v_and_b32 v{t0}, 15, v0")
    a(f"v_lshrrev_b32 v{t1}, 1, v{t0}")
    a(f"v_lshrrev_b32 v{t2}, 4, v0")
    a(f"v_xor_b32 v{t3}, v{t2}, v{t1}")
    a(f"v_lshlrev_b32 v{t3}, 4, v{t3}")
    a(f"v_lshl_add_u32 v{V_QA}, v{t0}, 7, v{t3}")
    a(f"s_and_b32 s{S_T0}, s{S_WAVE}, 3")
    a(f"s_lshl_b32 s{S_T0}, s{S_T0}, 12")
    a(f"v_add_u32 v{V_QA}, s{S_T0}, v{V_QA}")
    a(f"v_xor_b32 v{V_QA+1}, 64, v{V_QA}")
    a(f"v_lshrrev_b32 v{t1}, 2, v{t0}")
    a(f"v_lshl_add_u32 v{t1}, v{t2}, 3, v{t1}")
    a(f"v_lshlrev_b32 v{V_QW}, 6, v{t1}")
    a(f"v_bfe_u32 v{t1}, v0, 1, 1")
    a(f"s_lshr_b32 s{S_T1}, s{S_WAVE}, 2")
    a(f"s_lshl_b32 s{S_T1}, s{S_T1}, 1")
    a(f"v_add_u32 v{t1}, s{S_T1}, v{t1}")
    a(f"v_and_b32 v{t3}, 1, v{t2}")
    a(f"v_lshlrev_b32 v{t3}, 1, v{t3}")
    a(f"v_xor_b32 v{t1}, v{t1}, v{t3}")
    a(f"v_lshl_add_u32 v{V_QW}, v{t1}, 4, v{V_QW}")
    a(f"v_and_b32 v{t1}, 1, v0")
    a(f"v_lshl_add_u32 v{V_QW}, v{t1}, 3, v{V_QW}")
    a(f"v_add_u32 v{V_QW}, {QOFF}, v{V_QW}")
    a(f"v_lshrrev_b32 v{t1}, 3, v0")
    a(f"s_lshl_b32 s{S_T0}, s{S_GR}, 7")
    a(f"s_lshl_b32 s{S_T1}, s{S_WAVE}, 4")
    a(f"s_add_u32 s{S_T0}, s{S_T0}, s{S_T1}")
    a(f"v_add_u32 v{t1}, s{S_T0}, v{t1}")
    a(f"v_lshlrev_b32 v{t1}, 10, v{t1}")
    a(f"v_and_b32 v{t3}, 7, v0")
    a(f"v_xor_b32 v{t3}, v{t3}, v{t2}")
    a(f"v_lshl_add_u32 v{V_DX}, v{t3}, 4, v{t1}")
    a(f"v_xor_b32 v{V_DX+1}, 64, v{V_DX}")
    a(f"v_add_u32 v{V_DX+1}, 8192, v{V_DX+1}")
    a(f"v_lshrrev_b32 v{t1}, 2, v0")
    a(f"s_and_b32 s{S_T0}, s{S_WAVE}, 3")
    a(f"s_lshl_b32 s{S_T0}, s{S_T0}, 4")
    a(f"v_add_u32 v{t1}, s{S_T0}, v{t1}")
    a(f"v_lshlrev_b32 v{t1}, 10, v{t1}")
    a(f"v_lshrrev_b32 v{t3}, 5, v0")
    a(f"v_lshlrev_b32 v{t3}, 1, v{t3}")
    a(f"v_and_b32 v{t0}, 3, v0")
    a(f"v_xor_b32 v{t3}, v{t3}, v{t0}")
    a(f"v_lshl_add_u32 v{V_DQ}, v{t3}, 4, v{t1}")
    a(f"s_lshl_b32 s{S_T0}, s{S_M}, 6")
    a(f"v_add_u32 v{V_DQ}, s{S_T0}, v{V_DQ}")
    a(f"s_lshl_b32 s30, s{S_WAVE}, 11")
    a(f"s_and_b32 s31, s{S_WAVE}, 3")
    a(f"s_lshl_b32 s31, s31, 10")
    a(f"s_add_u32 s31, s31, {QOFF}")

def emit_A_dma(a, s):
    slot = (s % 4) * SLOT
    for i in range(2):
        a(f"s_add_u32 m0, s30, {slot + i*1024}")
        a(f"s_mov_b32 s{S_T0}, {s*128}")
        a(f"buffer_load_dwordx4 v{12+i}, {sr(S_X,4)}, s{S_T0} offen lds")
    a(f"s_add_u32 m0, s31, {slot}")
    a(f"s_mov_b32 s{S_T0}, {s*65536}")
    a(f"buffer_load_dwordx4 v14, {sr(S_WQ,4)}, s{S_T0} offen lds")

A_ACC = 32
def emit_A_gemm(a):
    V_QA, V_QW = 8, 10
    XQ, WQ = 40, 56
    for s in range(3): emit_A_dma(a, s)
    for s in range(NSTAGE):
        inflight = min(2, NSTAGE - 1 - s)
        a(f"s_waitcnt vmcnt({3*inflight})")
        a("s_barrier")
        if s + 3 < NSTAGE: emit_A_dma(a, s + 3)
        for s2 in range(2):
            a(f"ds_read_b64_tr_b16 {vr(WQ+4*s2,2)}, v{V_QW} offset:{s2*2048}")
            a(f"ds_read_b64_tr_b16 {vr(WQ+4*s2+2,2)}, v{V_QW} offset:{s2*2048+256}")
            for u in range(2):
                a(f"ds_read_b128 {vr(XQ+8*s2+4*u,4)}, v{V_QA+s2} offset:{u*2048}")
        for s2 in range(2):
            a(f"s_waitcnt lgkmcnt({4 if s2 == 0 else 0})")
            for u in range(2):
                c = "0" if (s == 0 and s2 == 0) else vr(A_ACC+4*u,4)
                a(f"v_mfma_f32_16x16x32_bf16 {vr(A_ACC+4*u,4)}, {vr(WQ+4*s2,4)}, {vr(XQ+8*s2+4*u,4)}, {c}")
        if s + 1 < NSTAGE:
            d = SLOT if (s + 1) % 4 else -3 * SLOT
            for r in (V_QA, V_QA+1, V_QW):
                a(f"v_add_u32 v{r}, {hex(d & 0xffffffff)}, v{r}")

def emit_A_qfrag(a, dst):
    a(f"s_mov_b32 s{S_T0}, {hexf(0.25*LOG2E)}")
    for i in range(8):
        a(f"v_mul_f32 v{A_ACC+i}, s{S_T0}, v{A_ACC+i}")
    a(f"v_cvt_pk_bf16_f32 v{dst}, v{A_ACC}, v{A_ACC+1}")
    a(f"v_cvt_pk_bf16_f32 v{dst+1}, v{A_ACC+2}, v{A_ACC+3}")
    a(f"v_cvt_pk_bf16_f32 v{dst+2}, v{A_ACC+4}, v{A_ACC+5}")
    a(f"v_cvt_pk_bf16_f32 v{dst+3}, v{A_ACC+6}, v{A_ACC+7}")
    a(f"v_permlane16_swap_b32 v{dst}, v{dst+2}")
    a(f"v_permlane16_swap_b32 v{dst+1}, v{dst+3}")

G_ACC, G_XB, G_WB = 64, 32, 48
def emit_G_setup(a):
    t0, t1, t2, t3 = 16, 17, 18, 19
    a(f"s_and_b32 s{S_T0}, s{S_G}, 1")
    a(f"s_lshr_b32 s{S_T1}, s{S_G}, 1")
    a(f"v_and_b32 v{t0}, 31, v0")
    a(f"v_bfe_u32 v{t1}, v0, 1, 3")
    a(f"v_lshrrev_b32 v{t2}, 5, v0")
    a(f"v_xor_b32 v{t1}, v{t1}, v{t2}")
    a(f"v_lshlrev_b32 v{t1}, 4, v{t1}")
    a(f"v_lshl_add_u32 v8, v{t0}, 7, v{t1}")
    a(f"s_lshl_b32 s{S_T2}, s{S_T0}, 13")
    a(f"v_add_u32 v8, s{S_T2}, v8")
    for ks in range(1, 4):
        a(f"v_xor_b32 v{8+ks}, {32*ks}, v8")
    a(f"v_bfe_u32 v{t0}, v0, 2, 2")
    a(f"v_lshl_add_u32 v{t1}, v{t2}, 3, v{t0}")
    a(f"v_lshlrev_b32 v12, 8, v{t1}")
    a(f"s_lshl_b32 s{S_T2}, s{S_T1}, 1")
    a(f"v_xor_b32 v{t0}, s{S_T2}, v{t0}")
    a(f"v_lshl_add_u32 v12, v{t0}, 6, v12")
    a(f"v_bfe_u32 v{t1}, v0, 4, 1")
    a(f"v_lshl_add_u32 v12, v{t1}, 5, v12")
    a(f"v_bfe_u32 v{t1}, v0, 1, 1")
    a(f"v_lshl_add_u32 v12, v{t1}, 4, v12")
    a(f"v_and_b32 v{t1}, 1, v0")
    a(f"v_lshl_add_u32 v12, v{t1}, 3, v12")
    a(f"v_add_u32 v12, {WOFF}, v12")
    a(f"v_xor_b32 v13, 64, v12")
    a(f"v_lshrrev_b32 v{t0}, 4, v0")
    a(f"v_lshlrev_b32 v{t1}, 2, v{t0}")
    a(f"v_and_b32 v{t3}, 15, v0")
    a(f"v_xor_b32 v{t1}, v{t1}, v{t3}")
    a(f"v_lshlrev_b32 v{t1}, 4, v{t1}")
    a(f"s_lshl_b32 s{S_T2}, s{S_G}, 4")
    a(f"v_add_u32 v{t0}, s{S_T2}, v{t0}")
    a(f"v_mul_u32_u24 v{t0}, 3584, v{t0}")
    a(f"v_add_u32 v14, v{t0}, v{t1}")
    a(f"s_lshl_b32 s{S_T2}, s{S_M}, 8")
    a(f"v_add_u32 v14, s{S_T2}, v14")
    a(f"s_lshl_b32 s30, s{S_G}, 12")
    a(f"s_add_u32 s30, s30, {WOFF}")

def emit_G_dma(a, s):
    slot = (s % 4) * SLOT
    for i in range(4):
        a(f"s_add_u32 m0, s30, {slot + i*1024}")
        a(f"s_mov_b32 s{S_T0}, {(s*64 + 4*i)*3584}")
        a(f"buffer_load_dwordx4 v14, {sr(S_W,4)}, s{S_T0} offen lds")

def emit_G_reads(a, ks, buf):
    for t in range(2):
        w = G_WB + 8*buf + 4*t
        a(f"ds_read_b64_tr_b16 {vr(w,2)}, v{12+t} offset:{ks*4096}")
        a(f"ds_read_b64_tr_b16 {vr(w+2,2)}, v{12+t} offset:{ks*4096+1024}")
    for t in range(2):
        a(f"ds_read_b128 {vr(G_XB + 8*buf + 4*t,4)}, v{8+ks} offset:{t*4096}")

def emit_G_gemm(a):
    for s in range(3): emit_G_dma(a, s)
    for s in range(NSTAGE):
        inflight = min(2, NSTAGE - 1 - s)
        a(f"s_waitcnt vmcnt({4*inflight})")
        a("s_barrier")
        if s == 0: diag_mark(a, 0)
        emit_G_reads(a, 0, 0)
        if s + 3 < NSTAGE: emit_G_dma(a, s + 3)
        for ks in range(4):
            buf = ks & 1
            if ks < 3:
                emit_G_reads(a, ks + 1, buf ^ 1)
                a("s_waitcnt lgkmcnt(6)")
            else:
                a("s_waitcnt lgkmcnt(0)")
            for nt in range(2):
                for tt in range(2):
                    acc = G_ACC + 16*(2*nt + tt)
                    c = "0" if (s == 0 and ks == 0) else vr(acc,16)
                    a(f"v_mfma_f32_32x32x16_bf16 {vr(acc,16)}, {vr(G_WB+8*buf+4*nt,4)}, {vr(G_XB+8*buf+4*tt,4)}, {c}")
        if s + 1 < NSTAGE:
            d = SLOT if (s + 1) % 4 else -3 * SLOT
            for r in (8, 9, 10, 11, 12, 13):
                a(f"v_add_u32 v{r}, {hex(d & 0xffffffff)}, v{r}")

def emit_G_silu_store(a):
    t = 16
    a(f"v_lshlrev_b32 v8, 4, v0")
    a(f"s_and_b32 s{S_T0}, s{S_G}, 1")
    a(f"s_lshl_b32 s{S_T0}, s{S_T0}, 1")
    a(f"s_lshl_b32 s{S_T1}, s{S_GR}, 2")
    a(f"s_add_u32 s{S_T0}, s{S_T0}, s{S_T1}")
    a(f"s_mul_i32 s{S_T0}, s{S_T0}, 112")
    a(f"s_lshl_b32 s{S_T1}, s{S_M}, 3")
    a(f"s_add_u32 s{S_T0}, s{S_T0}, s{S_T1}")
    a(f"s_lshr_b32 s{S_T1}, s{S_G}, 1")
    a(f"s_lshl_b32 s{S_T1}, s{S_T1}, 2")
    a(f"s_add_u32 s{S_T0}, s{S_T0}, s{S_T1}")
    a(f"s_lshl_b32 s{S_T0}, s{S_T0}, 10")
    a(f"s_add_u32 s{S_T0}, s{S_T0}, {HF}")
    a(f"s_mov_b32 s{S_T2}, {hexf(-LOG2E)}")
    for nt in range(2):
        for tt in range(2):
            acc = G_ACC + 16*(2*nt + tt)
            tmp = 32 if (2*nt + tt) % 2 == 0 else 48
            for i in range(16): a(f"v_mul_f32 v{tmp+i}, s{S_T2}, v{acc+i}")
            for i in range(16): a(f"v_exp_f32 v{tmp+i}, v{tmp+i}")
            for i in range(16): a(f"v_add_f32 v{tmp+i}, 1.0, v{tmp+i}")
            for i in range(16): a(f"v_rcp_f32 v{tmp+i}, v{tmp+i}")
            for i in range(16): a(f"v_mul_f32 v{tmp+i}, v{acc+i}, v{tmp+i}")
            for i in range(8): a(f"v_cvt_pk_bf16_f32 v{acc+i}, v{tmp+2*i}, v{tmp+2*i+1}")
            for hf in range(2):
                off = (tt*112 + 2*nt + hf) * 1024
                a(f"s_add_u32 s{S_T1}, s{S_T0}, {off}")
                a(f"buffer_store_dwordx4 {vr(acc+4*hf,4)}, v8, {sr(S_WS,4)}, s{S_T1} offen")

KV_ACC = 64
WVOFF = WOFF + 2048 + 128
def emit_KV_setup(a):
    t0, t1, t2, t3 = 16, 17, 18, 19
    a(f"s_sub_u32 s{S_T0}, s{S_M}, 14")
    a(f"s_lshl_b32 s{S_T0}, s{S_T0}, 2")
    a(f"s_add_u32 s{S_T0}, s{S_T0}, s{S_G}")
    a(f"s_mov_b32 s29, s{S_T0}")
    a(f"v_and_b32 v{t0}, 15, v0")
    a(f"v_lshrrev_b32 v{t1}, 1, v{t0}")
    a(f"v_lshrrev_b32 v{t2}, 4, v0")
    a(f"v_xor_b32 v{t3}, v{t2}, v{t1}")
    a(f"v_lshlrev_b32 v{t3}, 4, v{t3}")
    a(f"v_lshl_add_u32 v8, v{t0}, 7, v{t3}")
    a(f"s_lshl_b32 s{S_T1}, s{S_T0}, 11")
    a(f"v_add_u32 v8, s{S_T1}, v8")
    a(f"v_xor_b32 v9, 64, v8")
    a(f"v_lshrrev_b32 v{t1}, 2, v{t0}")
    a(f"v_lshl_add_u32 v{t1}, v{t2}, 3, v{t1}")
    a(f"v_lshlrev_b32 v10, 5, v{t1}")
    a(f"v_and_b32 v{t1}, 3, v0")
    a(f"v_lshl_add_u32 v10, v{t1}, 3, v10")
    a(f"v_add_u32 v10, {WOFF}, v10")
    a(f"v_lshlrev_b32 v11, 4, v{t2}")
    a(f"v_add_u32 v11, {GATE_LDS}, v11")
    a(f"v_lshlrev_b32 v14, 4, v0")
    a(f"s_and_b32 s{S_T1}, s{S_G}, 1")
    a(f"s_lshl_b32 s{S_T1}, s{S_T1}, 10")
    a(f"v_add_u32 v14, s{S_T1}, v14")
    a(f"s_lshr_b32 s{S_T2}, s{S_G}, 1")
    a(f"s_mul_i32 s{S_T2}, s{S_T2}, {WVOFF - WOFF}")
    a(f"s_add_u32 s30, s{S_T1}, s{S_T2}")
    a(f"s_add_u32 s30, s30, {WOFF}")

def emit_KV_dma(a, s):
    slot = (s % 4) * SLOT
    a(f"s_add_u32 m0, s30, {slot}")
    a(f"s_mov_b32 s{S_T0}, {s*2048}")
    a(f"buffer_load_dwordx4 v14, {sr(S_W,4)}, s{S_T0} offen lds")

def emit_KV_gemm(a, S_GATE):
    X, WK, WV, GW = 32, 40, 48, 56
    a(f"v_lshlrev_b32 v15, 4, v0")
    a(f"s_mov_b32 m0, {GATE_LDS}")
    a(f"s_mov_b32 s{S_T0}, 0")
    a(f"buffer_load_dwordx4 v15, {sr(S_GATE,4)}, s{S_T0} offen lds")
    for s in range(3): emit_KV_dma(a, s)
    for s in range(NSTAGE):
        inflight = min(2, NSTAGE - 1 - s)
        a(f"s_waitcnt vmcnt({inflight})")
        a("s_barrier")
        if s + 3 < NSTAGE: emit_KV_dma(a, s + 3)
        for s2 in range(2):
            a(f"ds_read_b128 {vr(X+4*s2,4)}, v{8+s2}")
            a(f"ds_read_b64_tr_b16 {vr(WK+4*s2,2)}, v10 offset:{s2*1024}")
            a(f"ds_read_b64_tr_b16 {vr(WK+4*s2+2,2)}, v10 offset:{s2*1024+128}")
            a(f"ds_read_b64_tr_b16 {vr(WV+4*s2,2)}, v10 offset:{WVOFF-WOFF+s2*1024}")
            a(f"ds_read_b64_tr_b16 {vr(WV+4*s2+2,2)}, v10 offset:{WVOFF-WOFF+s2*1024+128}")
            a(f"ds_read_b128 {vr(GW+4*s2,4)}, v11 offset:{s*128+s2*64}")
        a("s_waitcnt lgkmcnt(0)")
        for s2 in range(2):
            z = (s == 0 and s2 == 0)
            A = KV_ACC
            a(f"v_mfma_f32_16x16x32_bf16 {vr(A,4)}, {vr(WK+4*s2,4)}, {vr(X+4*s2,4)}, {'0' if z else vr(A,4)}")
            a(f"v_mfma_f32_16x16x32_bf16 {vr(A+4,4)}, {vr(X+4*s2,4)}, {vr(WV+4*s2,4)}, {'0' if z else vr(A+4,4)}")
            a(f"v_mfma_f32_16x16x32_bf16 {vr(A+8,4)}, {vr(GW+4*s2,4)}, {vr(X+4*s2,4)}, {'0' if z else vr(A+8,4)}")
        if s + 1 < NSTAGE:
            d = SLOT if (s + 1) % 4 else -3 * SLOT
            for r in (8, 9, 10):
                a(f"v_add_u32 v{r}, {hex(d & 0xffffffff)}, v{r}")

def emit_KV_store(a, cache=""):
    t0, t1, t2, t3 = 16, 17, 18, 19
    A = KV_ACC
    a(f"s_lshl_b32 s{S_T0}, s{S_GR}, 3")
    a(f"s_add_u32 s{S_T0}, s{S_T0}, s29")
    a(f"s_lshr_b32 s{S_T1}, s{S_T0}, 1")
    a(f"s_lshl_b32 s{S_T1}, s{S_T1}, 11")
    a(f"s_add_u32 s{S_T1}, s{S_T1}, {KVF}")
    a(f"s_and_b32 s{S_T2}, s{S_T0}, 1")
    a(f"v_and_b32 v{t0}, 15, v0")
    a(f"v_lshrrev_b32 v{t2}, 4, v0")
    a(f"v_lshrrev_b32 v{t1}, 1, v{t2}")
    a(f"v_lshlrev_b32 v8, 9, v{t1}")
    a(f"v_lshl_add_u32 v8, v{t0}, 4, v8")
    a(f"v_and_b32 v{t3}, 1, v{t2}")
    a(f"v_lshl_add_u32 v8, v{t3}, 3, v8")
    a(f"s_lshl_b32 s{S_T3}, s{S_T2}, 8")
    a(f"v_add_u32 v8, s{S_T3}, v8")
    a(f"v_lshlrev_b32 v9, 8, v{t3}")
    a(f"v_lshl_add_u32 v9, v{t0}, 4, v9")
    a(f"v_lshl_add_u32 v9, v{t1}, 3, v9")
    a(f"s_lshl_b32 s{S_T3}, s{S_T2}, 9")
    a(f"s_add_u32 s{S_T3}, s{S_T3}, 1024")
    a(f"v_add_u32 v9, s{S_T3}, v9")
    a(f"v_lshlrev_b32 v10, 2, v{t0}")
    a(f"s_lshl_b32 s{S_T0}, s{S_T0}, 6")
    a(f"s_add_u32 s{S_T0}, s{S_T0}, {GATE}")
    a(f"v_cvt_pk_bf16_f32 v32, v{A}, v{A+1}")
    a(f"v_cvt_pk_bf16_f32 v33, v{A+2}, v{A+3}")
    a(f"v_cvt_pk_bf16_f32 v34, v{A+4}, v{A+5}")
    a(f"v_cvt_pk_bf16_f32 v35, v{A+6}, v{A+7}")
    a(f"buffer_store_dwordx2 v[32:33], v8, {sr(S_WS,4)}, s{S_T1} offen {cache}")
    a(f"buffer_store_dwordx2 v[34:35], v9, {sr(S_WS,4)}, s{S_T1} offen {cache}")
    a(f"v_mul_f32 v36, {hexf(-LOG2E)}, v{A+8}")
    a(f"v_exp_f32 v36, v36")
    a(f"v_add_f32 v36, 1.0, v36")
    a(f"v_rcp_f32 v36, v36")
    a(f"buffer_store_dword v36, v10, {sr(S_WS,4)}, s{S_T0} offen {cache}")

def kernel_A(label):
    a = Asm()
    diag_start(a)
    wg_decode(a, S_GR, S_M, f"{label}_exit")
    srd(a, S_X, 'x', 2048*1024)
    srd(a, S_WQ, 'wq', 512*1024)
    srd(a, S_WS, 'ws', WS_BYTES)
    wave_id(a, S_WAVE, 1)
    a(f"s_cmp_ge_u32 s{S_WAVE}, 8")
    a(f"s_cbranch_scc1 {label}_G")
    a("s_waitcnt lgkmcnt(0)")
    emit_A_setup(a)
    emit_A_gemm(a)
    emit_A_qfrag(a, 40)
    a(f"s_and_b32 s{S_T0}, s{S_WAVE}, 3")
    a(f"s_lshl_b32 s{S_T1}, s{S_GR}, 2")
    a(f"s_add_u32 s{S_T0}, s{S_T0}, s{S_T1}")
    a(f"s_lshl_b32 s{S_T0}, s{S_T0}, 5")
    a(f"s_lshl_b32 s{S_T1}, s{S_M}, 1")
    a(f"s_add_u32 s{S_T0}, s{S_T0}, s{S_T1}")
    a(f"s_lshr_b32 s{S_T1}, s{S_WAVE}, 2")
    a(f"s_add_u32 s{S_T0}, s{S_T0}, s{S_T1}")
    a(f"s_lshl_b32 s{S_T0}, s{S_T0}, 10")
    a(f"s_add_u32 s{S_T0}, s{S_T0}, {QF}")
    a(f"v_lshlrev_b32 v8, 4, v0")
    a(f"buffer_store_dwordx4 v[40:43], v8, {sr(S_WS,4)}, s{S_T0} offen")
    diag_end(a, 0, S_WS, S_WAVE)
    a("s_endpgm")
    a.label(f"{label}_G")
    a(f"s_sub_u32 s{S_G}, s{S_WAVE}, 8")
    a(f"s_cmp_ge_u32 s{S_M}, 14")
    a(f"s_cbranch_scc1 {label}_KV")
    srd(a, S_W, 'w1', 512*3584)
    a("s_waitcnt lgkmcnt(0)")
    emit_G_setup(a)
    emit_G_gemm(a)
    diag_mark(a, 1)
    emit_G_silu_store(a)
    diag_end(a, 0, S_WS, S_WAVE)
    a("s_endpgm")
    a.label(f"{label}_KV")
    a(f"s_load_dwordx2 s[32:33], s[0:1], {KA['wk']}")
    a(f"s_load_dwordx2 s[34:35], s[0:1], {KA['wv']}")
    srd(a, 36, 'gate', 1024)
    a("s_waitcnt lgkmcnt(0)")
    a(f"s_cmp_lt_u32 s{S_G}, 2")
    a(f"s_cselect_b32 s{S_W}, s32, s34")
    a(f"s_cselect_b32 s{S_W+1}, s33, s35")
    a(f"s_mov_b32 s{S_W+2}, {512*32}")
    a(f"s_mov_b32 s{S_W+3}, 0x00020000")
    emit_KV_setup(a)
    emit_KV_gemm(a, 36)
    emit_KV_store(a)
    diag_end(a, 0, S_WS, S_WAVE)
    a.label(f"{label}_exit")
    a("s_endpgm")
    return a.render()
```

```python
import os
from common import *
import phase0 as P
import attn as A
import ffn2 as F

LABEL = NAME + "_kernel"
S_X, S_W, S_WS, S_WQ = P.S_X, P.S_W, P.S_WS, P.S_WQ
S_WAVE, S_GR, S_M, S_G = P.S_WAVE, P.S_GR, P.S_M, P.S_G
T0, T1, T2, T3 = P.S_T0, P.S_T1, P.S_T2, P.S_T3
S_GATE = 36
S_W2, S_WO, S_OUT, S_DBG = 48, 52, 56, 60
S_SPIN = 64
LDS_BYTES = 163840
LDS_FLAGS = LDS_BYTES - 64
RING_BASE = 131072
SPIN_MAX = 1 << 18
SWITCH_STEP = int(os.environ.get("SWITCH", "53"))
SC = "sc1"

_uid = [0]
def uid(p):
    _uid[0] += 1
    return f"{p}{_uid[0]}"

def spin_global(a, vaddr, vtmp, srd, soff, expect):
    L = uid("L_poll"); D = uid("L_pollx")
    a(f"s_mov_b32 s{S_SPIN}, {SPIN_MAX}")
    a.label(L)
    a(f"buffer_load_dword v{vtmp}, v{vaddr}, {sr(srd,4)}, {soff} offen {SC}")
    a("s_waitcnt vmcnt(0)")
    a(f"v_cmp_ne_u32 vcc, {expect}, v{vtmp}")
    a(f"s_cbranch_vccz {D}")
    a(f"s_sub_u32 s{S_SPIN}, s{S_SPIN}, 1")
    a(f"s_cmp_eq_u32 s{S_SPIN}, 0")
    a(f"s_cbranch_scc1 {D}")
    a("s_sleep 2")
    a(f"s_branch {L}")
    a.label(D)

def spin_lds(a, vaddr, vtmp, off, expect):
    L = uid("L_lp"); D = uid("L_lpx")
    a(f"s_mov_b32 s{S_SPIN}, {SPIN_MAX}")
    a.label(L)
    a(f"ds_read_b32 v{vtmp}, v{vaddr} offset:{off}")
    a("s_waitcnt lgkmcnt(0)")
    a(f"v_cmp_gt_u32 vcc, {expect}, v{vtmp}")
    a(f"s_cbranch_vccz {D}")
    a(f"s_sub_u32 s{S_SPIN}, s{S_SPIN}, 1")
    a(f"s_cmp_eq_u32 s{S_SPIN}, 0")
    a(f"s_cbranch_scc1 {D}")
    a("s_sleep 1")
    a(f"s_branch {L}")
    a.label(D)

def one_lane(a): a("s_mov_b64 exec, 1")
def all_lanes(a): a("s_mov_b64 exec, -1")

def store_flag(a, soff_reg, vzero, vone):
    a(f"v_mov_b32 v{vzero}, 0")
    a(f"v_mov_b32 v{vone}, 1")
    one_lane(a)
    a(f"buffer_store_dword v{vone}, v{vzero}, {sr(S_WS,4)}, s{soff_reg} offen {SC}")
    all_lanes(a)

def lds_add(a, vaddr, vone, off):
    one_lane(a)
    a(f"ds_add_u32 v{vaddr}, v{vone} offset:{off}")
    all_lanes(a)

def A_dma(a, s):
    slot = (s % 4) * P.SLOT
    for i in range(2):
        a(f"s_add_u32 m0, s30, {slot + i*1024}")
        a(f"s_mov_b32 s{T0}, {s*128}")
        a(f"buffer_load_dwordx4 v{12+i}, {sr(S_X,4)}, s{T0} offen lds")
    a(f"s_add_u32 m0, s31, {slot}")
    a(f"s_mov_b32 s{T0}, {s*65536}")
    a("s_mov_b64 exec, s[32:33]")
    a(f"buffer_load_dwordx4 v14, {sr(S_WQ,4)}, s{T0} offen lds")
    a("s_mov_b64 exec, -1")

def A_phase0(a):
    V_QA, V_QW, XQ, WQ = 8, 10, 40, 56
    P.emit_A_setup(a)
    a(f"s_cmp_lt_u32 s{S_WAVE}, 4")
    a("s_cselect_b32 s32, -1, 0")
    a("s_cselect_b32 s33, 0, -1")
    a(f"v_mov_b32 v16, {LDS_FLAGS}")
    a("v_mov_b32 v17, 0")
    for o in (0, 4, 8): a(f"ds_write_b32 v16, v17 offset:{o}")
    A_dma(a, 0); a("s_barrier")
    A_dma(a, 1); a("s_barrier")
    A_dma(a, 2)
    for s in range(P.NSTAGE):
        inflight = min(2, P.NSTAGE - 1 - s)
        a(f"s_waitcnt vmcnt({3*inflight}) lgkmcnt(0)")
        a("s_barrier")
        if s + 3 < P.NSTAGE: A_dma(a, s + 3)
        for s2 in range(2):
            a(f"ds_read_b64_tr_b16 {vr(WQ+4*s2,2)}, v{V_QW} offset:{s2*2048}")
            a(f"ds_read_b64_tr_b16 {vr(WQ+4*s2+2,2)}, v{V_QW} offset:{s2*2048+256}")
            for u in range(2):
                a(f"ds_read_b128 {vr(XQ+8*s2+4*u,4)}, v{V_QA+s2} offset:{u*2048}")
        for s2 in range(2):
            a(f"s_waitcnt lgkmcnt({4 if s2 == 0 else 0})")
            for u in range(2):
                c = "0" if (s == 0 and s2 == 0) else vr(P.A_ACC+4*u,4)
                a(f"v_mfma_f32_16x16x32_bf16 {vr(P.A_ACC+4*u,4)}, {vr(WQ+4*s2,4)}, {vr(XQ+8*s2+4*u,4)}, {c}")
        if s + 1 < P.NSTAGE:
            d = P.SLOT if (s + 1) % 4 else -3 * P.SLOT
            for r in (V_QA, V_QA+1, V_QW):
                a(f"v_add_u32 v{r}, {hex(d & 0xffffffff)}, v{r}")
    a("s_barrier")
    P.emit_A_qfrag(a, A.QR)

def attn_loop(a, label):
    def body(switch_at=None):
        for kb in range(A.UNROLL):
            if switch_at == kb: a("s_setprio 1")
            A.emit_step(a, kb)
        a(f"v_add_u32 v{A.KA_}, {A.UNROLL*2048}, v{A.KA_}")
        a(f"v_add_u32 v{A.VA_}, {A.UNROLL*2048}, v{A.VA_}")
    nA = SWITCH_STEP // A.UNROLL
    a(f"s_mov_b32 s{A.S_LOOP}, {nA}")
    a.label(f"{label}_loopA")
    body()
    a(f"s_cmp_eq_u32 s{A.S_LOOP}, {nA}")
    a(f"s_cbranch_scc1 {label}_landed")
    a.label(f"{label}_landed_ret")
    a(f"s_sub_u32 s{A.S_LOOP}, s{A.S_LOOP}, 1")
    a(f"s_cmp_lg_u32 s{A.S_LOOP}, 0")
    a(f"s_cbranch_scc1 {label}_loopA")
    a(f"s_mov_b32 s{A.S_LOOP}, {64 // A.UNROLL - nA}")
    a.label(f"{label}_loopB")
    body(SWITCH_STEP % A.UNROLL)
    a(f"s_sub_u32 s{A.S_LOOP}, s{A.S_LOOP}, 1")
    a(f"s_cmp_lg_u32 s{A.S_LOOP}, 0")
    a(f"s_cbranch_scc1 {label}_loopB")
    a(A.cv(63, 7))
    a("s_waitcnt lgkmcnt(0)")
    a(A.pv(63, 0)); a(A.pv(63, 1))
    a(f"v_subrev_u32 v{A.KA_}, {64*2048}, v{A.KA_}")
    a(f"v_subrev_u32 v{A.VA_}, {64*2048}, v{A.VA_}")

def attention(a, label):
    for i in range(16): a(f"v_mov_b32 v{A.CB+i}, 0")
    a(f"s_mov_b32 s{A.S_PASS}, 0")
    a.label(f"{label}_pass")
    A.emit_pass_init(a)
    attn_loop(a, label)
    a(f"s_cmp_lg_u32 s{A.S_PASS}, 0")
    a(f"s_cbranch_scc1 {label}_done")
    a("s_nop 7")
    TMP, OA = A.TMP, A.OA
    a(f"v_mov_b32 v{TMP}, {hexf(2.0**-64)}")
    a(f"v_mov_b32 v{TMP+1}, {hexf(2.0**64)}")
    a(f"v_cmp_ge_f32 s[44:45], v{OA+8}, v{TMP}")
    a(f"v_cmp_le_f32 s[46:47], v{OA+8}, v{TMP+1}")
    a(f"s_and_b64 s[44:45], s[44:45], s[46:47]")
    a(f"v_mov_b32 v{TMP}, 0x7f800000")
    for i in range(8):
        a(f"v_cmp_lt_f32 s[46:47], abs(v{OA+i}), v{TMP}")
        a(f"s_and_b64 s[44:45], s[44:45], s[46:47]")
    a(f"s_cmp_eq_u64 s[44:45], exec")
    a(f"s_cbranch_scc1 {label}_done")
    A.emit_maxpass(a, label)
    a(f"s_mov_b32 s{A.S_PASS}, 1")
    a(f"s_branch {label}_pass")
    a.label(f"{label}_landed")
    spin_lds(a, 3, 133, 4, 4)
    a(f"s_branch {label}_landed_ret")
    a.label(f"{label}_done")

def A_main(a):
    label = "L_att"
    a("v_mov_b32 v3, " + str(LDS_FLAGS))
    A.emit_attn_setup(a)
    a(f"s_and_b32 s{T0}, s{S_WAVE}, 3")
    a(f"s_lshl_b32 s{T1}, s{S_GR}, 2")
    a(f"s_add_u32 s{T0}, s{T0}, s{T1}")
    a(f"s_lshl_b32 s27, s{T0}, 7")
    a(f"s_add_u32 s27, s27, {GATE}")
    a(f"s_lshl_b32 s{T0}, s{T0}, 5")
    a(f"s_lshl_b32 s{T1}, s{S_M}, 1")
    a(f"s_add_u32 s{T0}, s{T0}, s{T1}")
    a(f"s_lshr_b32 s{T1}, s{S_WAVE}, 2")
    a(f"s_add_u32 s{T0}, s{T0}, s{T1}")
    a(f"s_lshl_b32 s{T0}, s{T0}, 10")
    a(f"s_add_u32 s29, s{T0}, {OF}")
    a(f"s_lshl_b32 s34, s{S_GR}, 12")
    a(f"s_lshl_b32 s{T1}, s{S_M}, 7")
    a(f"s_add_u32 s34, s34, s{T1}")
    a(f"s_lshl_b32 s{T1}, s{S_WAVE}, 2")
    a(f"s_add_u32 s34, s34, s{T1}")
    a(f"s_add_u32 s34, s34, {FLAGS + 2048}")
    a(f"v_and_b32 v2, 31, v0")
    a(f"v_lshlrev_b32 v2, 2, v2")
    spin_lds(a, 3, 133, 0, 4)
    diag_mark(a, 1)
    a(f"buffer_load_dword v{A.GATEV}, v2, {sr(S_WS,4)}, s27 offen {SC}")
    a(f"s_cmp_lt_u32 s{S_WAVE}, 4")
    a("s_cbranch_scc1 L_att_old")
    a("s_setprio 2")
    a("s_branch L_att_go")
    a.label("L_att_old")
    a("s_setprio 1")
    a.label("L_att_go")
    attention(a, label)
    diag_mark(a, 2)
    a("s_waitcnt vmcnt(0)")
    A.emit_o_frag(a, A.TMP+4)
    a(f"v_lshlrev_b32 v2, 4, v0")
    a(f"buffer_store_dwordx4 {vr(A.TMP+4,4)}, v2, {sr(S_WS,4)}, s29 offen {SC}")
    a("s_waitcnt vmcnt(0)")
    store_flag(a, 34, 8, 9)
    diag_end(a, 0, S_WS, S_WAVE)
    a("s_endpgm")

FB = [32, 48, 128, 144]
def G_reads(a, ks, buf):
    b = FB[buf]
    for t in range(2):
        a(f"ds_read_b64_tr_b16 {vr(b+4*t,2)}, v{12+t} offset:{ks*4096}")
        a(f"ds_read_b64_tr_b16 {vr(b+4*t+2,2)}, v{12+t} offset:{ks*4096+1024}")
    for t in range(2):
        a(f"ds_read_b128 {vr(b+8+4*t,4)}, v{8+ks} offset:{t*4096}")

def G_mfma(a, buf, first=False):
    b = FB[buf]
    for nt in range(2):
        for tt in range(2):
            acc = P.G_ACC + 16*(2*nt + tt)
            a(f"v_mfma_f32_32x32x16_bf16 {vr(acc,16)}, {vr(b+4*nt,4)}, {vr(b+8+4*tt,4)}, {'0' if first else vr(acc,16)}")

def s1_poll_issue(a):
    a("v_and_b32 v20, 31, v0")
    a("v_lshlrev_b32 v20, 2, v20")

def G_ffn1(a):
    P.emit_G_setup(a)
    P.emit_G_dma(a, 0); a("s_barrier")
    P.emit_G_dma(a, 1); a("s_barrier")
    P.emit_G_dma(a, 2)
    for s in range(P.NSTAGE):
        inflight = min(2, P.NSTAGE - 1 - s)
        a(f"s_waitcnt vmcnt({4*inflight}) lgkmcnt(0)")
        a("s_barrier")
        if s == 0: diag_mark(a, 0)
        G_reads(a, 0, 0)
        if s + 3 < P.NSTAGE: P.emit_G_dma(a, s + 3)
        if s > 0: G_mfma(a, 2, False)
        G_reads(a, 1, 1)
        if s > 0: G_mfma(a, 3, False)
        a("s_waitcnt lgkmcnt(6)")
        G_reads(a, 2, 2)
        G_mfma(a, 0, s == 0)
        a("s_waitcnt lgkmcnt(6)")
        G_reads(a, 3, 3)
        G_mfma(a, 1, False)
        if s + 1 < P.NSTAGE:
            d = P.SLOT if (s + 1) % 4 else -3 * P.SLOT
            for r in (8, 9, 10, 11, 12, 13):
                a(f"v_add_u32 v{r}, {hex(d & 0xffffffff)}, v{r}")
    a("s_waitcnt lgkmcnt(0)")
    a("s_barrier")
    G_mfma(a, 2); G_mfma(a, 3)

def kv_dma(a):
    a("v_and_b32 v20, 31, v0")
    a("v_lshlrev_b32 v20, 2, v20")
    spin_global(a, 20, 21, S_DBG, 0, 1)
    a("v_lshlrev_b32 v20, 4, v0")
    a(f"s_lshl_b32 s{T0}, s{S_G}, 10")
    a(f"s_add_u32 s{T1}, s{T0}, {KVF}")
    for i in range(32):
        a(f"s_add_u32 m0, s{T0}, {i*4096}")
        a(f"s_add_u32 s{T2}, s{T1}, {i*4096}")
        a(f"buffer_load_dwordx4 v20, {sr(S_WS,4)}, s{T2} offen {SC} lds")
    a(f"v_mov_b32 v21, {LDS_FLAGS}")
    a("v_mov_b32 v22, 1")

CHUNK0 = 6

def silu_tile(a, idx):
    nt, tt = idx >> 1, idx & 1
    acc = P.G_ACC + 16*idx
    tmp = 32 if idx % 2 == 0 else 48
    for i in range(16): a(f"v_mul_f32 v{tmp+i}, s{T2}, v{acc+i}")
    for i in range(16): a(f"v_exp_f32 v{tmp+i}, v{tmp+i}")
    for i in range(16): a(f"v_add_f32 v{tmp+i}, 1.0, v{tmp+i}")
    for i in range(16): a(f"v_rcp_f32 v{tmp+i}, v{tmp+i}")
    for i in range(16): a(f"v_mul_f32 v{tmp+i}, v{acc+i}, v{tmp+i}")
    for i in range(8): a(f"v_cvt_pk_bf16_f32 v{acc+i}, v{tmp+2*i}, v{tmp+2*i+1}")

def silu_store(a, idx):
    nt, tt = idx >> 1, idx & 1
    acc = P.G_ACC + 16*idx
    for hf in range(2):
        off = (tt*112 + 2*nt + hf) * 1024
        a(f"s_add_u32 s{T1}, s{T0}, {off}")
        a(f"buffer_store_dwordx4 {vr(acc+4*hf,4)}, v8, {sr(S_WS,4)}, s{T1} offen {SC}")

def G_silu(a):
    a(f"v_lshlrev_b32 v8, 4, v0")
    a(f"s_and_b32 s{T0}, s{S_G}, 1")
    a(f"s_lshl_b32 s{T0}, s{T0}, 1")
    a(f"s_lshl_b32 s{T1}, s{S_GR}, 2")
    a(f"s_add_u32 s{T0}, s{T0}, s{T1}")
    a(f"s_mul_i32 s{T0}, s{T0}, 112")
    a(f"s_lshl_b32 s{T1}, s{S_M}, 3")
    a(f"s_add_u32 s{T0}, s{T0}, s{T1}")
    a(f"s_lshr_b32 s{T1}, s{S_G}, 1")
    a(f"s_lshl_b32 s{T1}, s{T1}, 2")
    a(f"s_add_u32 s{T0}, s{T0}, s{T1}")
    a(f"s_lshl_b32 s{T0}, s{T0}, 10")
    a(f"s_add_u32 s{T0}, s{T0}, {HF}")
    a(f"s_mov_b32 s{T2}, {hexf(-LOG2E)}")
    silu_tile(a, 0)
    a(f"s_waitcnt vmcnt({32 - CHUNK0})")
    lds_add(a, 21, 22, 0)
    for idx in range(1, 4): silu_tile(a, idx)
    a("s_waitcnt vmcnt(0)")
    lds_add(a, 21, 22, 4)
    for idx in range(4): silu_store(a, idx)
    a("s_waitcnt vmcnt(0)")
    a(f"s_lshl_b32 s{T0}, s{S_GR}, 12")
    a(f"s_lshl_b32 s{T1}, s{S_M}, 7")
    a(f"s_add_u32 s{T0}, s{T0}, s{T1}")
    a(f"s_lshl_b32 s{T1}, s{S_G}, 2")
    a(f"s_add_u32 s{T0}, s{T0}, s{T1}")
    a(f"s_add_u32 s{T0}, s{T0}, {FLAGS}")
    store_flag(a, T0, 8, 9)

def G_kv(a):
    P.emit_KV_setup(a)
    X, WK, WV, GW = 32, 40, 48, 56
    a(f"s_sub_u32 s{T0}, s{S_M}, 14")
    a(f"s_lshl_b32 s{T0}, s{T0}, 11")
    a(f"s_lshl_b32 s{T1}, s{S_GR}, 12")
    a(f"s_add_u32 s{T0}, s{T0}, s{T1}")
    a(f"s_lshl_b32 s{T1}, s{S_G}, 9")
    a(f"s_add_u32 s{T0}, s{T0}, s{T1}")
    a(f"s_add_u32 s{T0}, s{T0}, {FLAGS}")
    a("v_lshlrev_b32 v16, 3, v0")
    a("v_mov_b32 v18, 0")
    a("v_mov_b32 v19, 0")
    a(f"buffer_store_dwordx2 v[18:19], v16, {sr(S_WS,4)}, s{T0} offen {SC}")
    a(f"v_lshlrev_b32 v15, 4, v0")
    a(f"s_mov_b32 m0, {P.GATE_LDS}")
    a(f"s_mov_b32 s{T0}, 0")
    a(f"buffer_load_dwordx4 v15, {sr(S_GATE,4)}, s{T0} offen lds")
    P.emit_KV_dma(a, 0); a("s_barrier")
    P.emit_KV_dma(a, 1); a("s_barrier")
    P.emit_KV_dma(a, 2)
    for s in range(P.NSTAGE):
        inflight = min(2, P.NSTAGE - 1 - s)
        n_after = inflight
        a(f"s_waitcnt vmcnt({n_after}) lgkmcnt(0)")
        a("s_barrier")
        if s + 3 < P.NSTAGE: P.emit_KV_dma(a, s + 3)
        for s2 in range(2):
            a(f"ds_read_b128 {vr(X+4*s2,4)}, v{8+s2}")
            a(f"ds_read_b64_tr_b16 {vr(WK+4*s2,2)}, v10 offset:{s2*1024}")
            a(f"ds_read_b64_tr_b16 {vr(WK+4*s2+2,2)}, v10 offset:{s2*1024+128}")
            a(f"ds_read_b64_tr_b16 {vr(WV+4*s2,2)}, v10 offset:{P.WVOFF-P.WOFF+s2*1024}")
            a(f"ds_read_b64_tr_b16 {vr(WV+4*s2+2,2)}, v10 offset:{P.WVOFF-P.WOFF+s2*1024+128}")
            a(f"ds_read_b128 {vr(GW+4*s2,4)}, v11 offset:{s*128+s2*64}")
        a("s_waitcnt lgkmcnt(0)")
        for s2 in range(2):
            z = (s == 0 and s2 == 0)
            K = P.KV_ACC
            a(f"v_mfma_f32_16x16x32_bf16 {vr(K,4)}, {vr(WK+4*s2,4)}, {vr(X+4*s2,4)}, {'0' if z else vr(K,4)}")
            a(f"v_mfma_f32_16x16x32_bf16 {vr(K+4,4)}, {vr(X+4*s2,4)}, {vr(WV+4*s2,4)}, {'0' if z else vr(K+4,4)}")
            a(f"v_mfma_f32_16x16x32_bf16 {vr(K+8,4)}, {vr(GW+4*s2,4)}, {vr(X+4*s2,4)}, {'0' if z else vr(K+8,4)}")
        if s + 1 < P.NSTAGE:
            d = P.SLOT if (s + 1) % 4 else -3 * P.SLOT
            for r in (8, 9, 10):
                a(f"v_add_u32 v{r}, {hex(d & 0xffffffff)}, v{r}")
    P.emit_KV_store(a, SC)
    a("s_waitcnt vmcnt(0)")
    a(f"v_mov_b32 v21, {LDS_FLAGS}")
    a("v_mov_b32 v22, 1")
    one_lane(a)
    a("ds_add_rtn_u32 v23, v21, v22 offset:8")
    a("s_waitcnt lgkmcnt(0)")
    a("v_readfirstlane_b32 s24, v23")
    all_lanes(a)
    a("s_cmp_eq_u32 s24, 3")
    a("s_cbranch_scc0 L_kv_nosig")
    a(f"s_sub_u32 s{T0}, s{S_M}, 14")
    a(f"s_lshl_b32 s{T1}, s{S_GR}, 1")
    a(f"s_add_u32 s{T0}, s{T0}, s{T1}")
    a(f"s_lshl_b32 s{T0}, s{T0}, 2")
    a("v_mov_b32 v8, 0")
    one_lane(a)
    a(f"buffer_store_dword v22, v8, {sr(S_DBG,4)}, s{T0} offen {SC}")
    all_lanes(a)
    a.label("L_kv_nosig")
    a("s_barrier")

DEPTH = 3
BB = [128, 136, 144]
def g_issue_w(a, j, which):
    slot = j % DEPTH
    loc = j if which == 'h' else j - 28
    wsrd, wbase = (S_W2, F.S_WB2) if which == 'h' else (S_WO, F.S_WBO)
    for i in range(2):
        a(f"s_add_u32 m0, s{F.S_RING}, {slot*F.RING_STAGE + i*1024}")
        a(f"s_add_u32 s{T2}, s{wbase}, {(loc*16 + 8*i)*1024}")
        a(f"buffer_load_dwordx4 v{F.V_DW}, {sr(wsrd,4)}, s{T2} offen lds")
def g_issue_a(a, j, which):
    slot = j % DEPTH
    loc = j if which == 'h' else j - 28
    abase, astride = (F.S_HB, 112*1024) if which == 'h' else (F.S_OB, 32*1024)
    for tt in range(2):
        a(f"s_add_u32 s{T2}, s{abase}, {loc*1024 + tt*astride}")
        a(f"buffer_load_dwordx4 {vr(BB[slot]+4*tt,4)}, v{F.V_LIN}, {sr(S_WS,4)}, s{T2} offen {SC}")
def g_reads(a, j):
    slot = j % DEPTH; buf = j & 1
    for nt in range(2):
        w = F.AB[buf] + 4*nt
        a(f"ds_read_b64_tr_b16 {vr(w,2)}, v{F.V_A0+nt} offset:{slot*F.RING_STAGE}")
        a(f"ds_read_b64_tr_b16 {vr(w+2,2)}, v{F.V_A0+nt} offset:{slot*F.RING_STAGE+1024}")
def g_mfmas(a, j, first):
    slot = j % DEPTH; buf = j & 1
    for nt in range(2):
        for tt in range(2):
            acc = F.ACC + 16*(2*nt + tt)
            a(f"v_mfma_f32_32x32x16_bf16 {vr(acc,16)}, {vr(F.AB[buf]+4*nt,4)}, {vr(BB[slot]+4*tt,4)}, {'0' if first else vr(acc,16)}")

def g_range(a, j0, j1, which):
    a(f"s_waitcnt vmcnt({2*(DEPTH-1)})")
    g_reads(a, j0)
    for j in range(j0, j1):
        rem = j1 - 1 - j
        if rem > 0:
            if j == j0: n = 2*(DEPTH-2)
            elif j - j0 == 1 and DEPTH == 3: n = 4
            else: n = 4 * (min(DEPTH - 1, rem) - 1)
            if rem < DEPTH - 1 or j + DEPTH - 1 >= j1 + 0 and False: pass
            a(f"s_waitcnt vmcnt({n})")
            g_reads(a, j+1)
            a("s_waitcnt lgkmcnt(4)")
        else:
            a("s_waitcnt lgkmcnt(0)")
        g_mfmas(a, j, first=(which == 'h' and j == j0))
        if j + DEPTH < j1:
            g_issue_w(a, j + DEPTH, which); g_issue_a(a, j + DEPTH, which)

def G_tail(a):
    F.S_WS, F.S_W2, F.S_WO, F.S_OUT = S_WS, S_W2, S_WO, S_OUT
    F.S_G = S_G
    save = F.DEPTH
    vg, sg = F.emit_setup(a, 0)
    a(f"s_mul_i32 s{F.S_RING}, s{S_G}, {DEPTH*F.RING_STAGE}")
    a(f"s_add_u32 s{F.S_RING}, s{F.S_RING}, {RING_BASE}")
    a(f"s_lshl_b32 s{T3}, s{S_G}, 13")
    a(f"s_sub_u32 s{T3}, s{F.S_RING}, s{T3}")
    a(f"v_add_u32 v{F.V_A0}, s{T3}, v{F.V_A0}")
    a(f"v_xor_b32 v{F.V_A1}, 64, v{F.V_A0}")
    a(f"buffer_load_dword v{F.V_G0}, v{vg}, {sr(S_WS,4)}, s{sg} offen {SC}")
    a(f"buffer_load_dword v{F.V_G1}, v{vg}, {sr(S_WS,4)}, s{sg} offen offset:128 {SC}")
    for j in range(DEPTH): g_issue_w(a, j, 'h')
    a("v_and_b32 v16, 7, v0")
    a("v_lshrrev_b32 v17, 1, v16")
    a("v_and_b32 v16, 1, v16")
    a("v_lshlrev_b32 v16, 3, v16")
    a("v_lshl_add_u32 v16, v17, 7, v16")
    a(f"s_mul_i32 s{T0}, s{S_G}, 28")
    a(f"s_lshr_b32 s{T0}, s{T0}, 3")
    a(f"s_lshl_b32 s{T0}, s{T0}, 7")
    a(f"s_and_b32 s{T1}, s{S_M}, 1")
    a(f"s_lshl_b32 s{T1}, s{T1}, 2")
    a(f"s_add_u32 s{T0}, s{T0}, s{T1}")
    a(f"s_lshl_b32 s{T1}, s{S_GR}, 12")
    a(f"s_add_u32 s{T0}, s{T0}, s{T1}")
    a(f"s_add_u32 s35, s{T0}, {FLAGS}")
    spin_global(a, 16, 17, S_WS, "s35", 1)
    for j in range(DEPTH): g_issue_a(a, j, 'h')
    g_range(a, 0, 28, 'h')
    diag_mark(a, 1)
    for j in range(28, 28 + DEPTH): g_issue_w(a, j, 'o')
    F.emit_scale_by_one_minus_g(a)
    a("v_and_b32 v16, 15, v0")
    a("v_lshrrev_b32 v17, 2, v16")
    a("v_and_b32 v18, 1, v16")
    a("v_bfe_u32 v16, v16, 1, 1")
    a("v_lshl_add_u32 v16, v16, 2, v18")
    a("v_lshlrev_b32 v16, 2, v16")
    a("v_lshl_add_u32 v16, v17, 7, v16")
    a(f"s_lshl_b32 s{T0}, s{S_G}, 9")
    a(f"s_and_b32 s{T1}, s{S_M}, 1")
    a(f"s_lshl_b32 s{T1}, s{T1}, 3")
    a(f"s_add_u32 s{T0}, s{T0}, s{T1}")
    a(f"s_lshl_b32 s{T1}, s{S_GR}, 12")
    a(f"s_add_u32 s{T0}, s{T0}, s{T1}")
    a(f"s_add_u32 s35, s{T0}, {FLAGS + 2048}")
    spin_global(a, 16, 17, S_WS, "s35", 1)
    diag_mark(a, 2)
    a("s_setprio 3")
    for j in range(28, 28 + DEPTH): g_issue_a(a, j, 'o')
    g_range(a, 28, 36, 'o')
    a("s_barrier")
    F.emit_reduce_store(a, 0)

def build():
    a = Asm()
    diag_start(a)
    wg_decode(a, S_GR, S_M, "L_exit")
    srd(a, S_X, 'x', 2048*1024)
    srd(a, S_WQ, 'wq', 512*1024)
    srd(a, S_WS, 'ws', WS_BYTES)
    wave_id(a, S_WAVE, 1)
    a(f"s_cmp_ge_u32 s{S_WAVE}, 8")
    a("s_cbranch_scc1 L_G")
    a("s_waitcnt lgkmcnt(0)")
    A_phase0(a)
    diag_mark(a, 0)
    A_main(a)
    a.label("L_G")
    a(f"s_sub_u32 s{S_G}, s{S_WAVE}, 8")
    srd(a, S_W2, 'w2', 1792*1024)
    srd(a, S_WO, 'wo', 512*1024)
    srd(a, S_OUT, 'out', 2048*1024)
    srd(a, S_DBG, 'dbg', 256)
    a(f"s_cmp_ge_u32 s{S_M}, 14")
    a("s_cbranch_scc1 L_KV")
    srd(a, S_W, 'w1', 512*3584)
    a("s_waitcnt lgkmcnt(0)")
    G_ffn1(a)
    a("s_setprio 3")
    kv_dma(a)
    G_silu(a)
    a("s_branch L_G2")
    a.label("L_KV")
    a(f"s_load_dwordx2 s[32:33], s[0:1], {KA['wk']}")
    a(f"s_load_dwordx2 s[34:35], s[0:1], {KA['wv']}")
    srd(a, S_GATE, 'gate', 1024)
    a("s_waitcnt lgkmcnt(0)")
    a(f"s_cmp_lt_u32 s{S_G}, 2")
    a(f"s_cselect_b32 s{S_W}, s32, s34")
    a(f"s_cselect_b32 s{S_W+1}, s33, s35")
    a(f"s_mov_b32 s{S_W+2}, {512*32}")
    a(f"s_mov_b32 s{S_W+3}, 0x00020000")
    G_kv(a)
    kv_dma(a)
    a(f"s_waitcnt vmcnt({32 - CHUNK0})")
    lds_add(a, 21, 22, 0)
    a("s_waitcnt vmcnt(0)")
    lds_add(a, 21, 22, 4)
    a.label("L_G2")
    a("s_setprio 0")
    G_tail(a)
    diag_end(a, 0, S_WS, S_WAVE)
    a.label("L_exit")
    a("s_endpgm")
    hdr = open('cdna_kernels/' + NAME + '.s.ref').read().split('; Override launch')[0]
    s = hdr + f"; @launch grid=(256,1,1) block=(768,1,1) lds={LDS_BYTES}\n"
    s += '.amdgcn_target "amdgcn-amd-amdhsa--gfx950"\n'
    s += kernel_head(LABEL) + a.render() + descriptor(LABEL, 168)
    return s

if __name__ == "__main__":
    import sys
    out = sys.argv[1] if len(sys.argv) > 1 else 'v2.s'
    s = build()
    open(out, 'w').write(s)
    print("wrote", out, len(s))
```

```python
from asmlib import *
NAME = "gated_mix__grouped_kv_mqa__dense_activation_silu__prompt"
QF, KVF, GATE, HF, OF, FLAGS = 0x000000, 0x200000, 0x220000, 0x300000, 0xA00000, 0x230000
WS_BYTES = 0x1000000
LOG2E = 1.4426950408889634
import struct, os
def f32(x): return struct.unpack('<I', struct.pack('<f', x))[0]
def hexf(x): return hex(f32(x))

KA = dict(x=0, wq=8, wk=16, wv=24, wo=32, bx=40, w1=48, w2=56, gate=64, out=72, dbg=80, ws=88)

def srd(a, s, ptr, nbytes):
    a(f"s_load_dwordx2 {sr(s,2)}, s[0:1], {KA[ptr]}")
    a(f"s_mov_b32 s{s+2}, {hex(nbytes)}")
    a(f"s_mov_b32 s{s+3}, 0x00020000")

def wg_decode(a, s_gr, s_m, exit_label):
    a(f"s_cmp_ge_u32 s2, 256")
    a(f"s_cbranch_scc1 {exit_label}")
    if os.environ.get("MAP", "1") == "0":
        a(f"s_and_b32 s{s_gr}, s2, 7")
        a(f"s_lshl_b32 s{s_gr}, s{s_gr}, 1")
        a(f"s_lshr_b32 s{s_m}, s2, 7")
        a(f"s_add_u32 s{s_gr}, s{s_gr}, s{s_m}")
        a(f"s_lshr_b32 s{s_m}, s2, 3")
        a(f"s_and_b32 s{s_m}, s{s_m}, 15")
    else:
        a(f"s_bfe_u32 s{s_gr}, s2, 0x20001")
        a(f"s_lshl_b32 s{s_gr}, s{s_gr}, 2")
        a(f"s_lshr_b32 s{s_m}, s2, 6")
        a(f"s_add_u32 s{s_gr}, s{s_gr}, s{s_m}")
        a(f"s_bfe_u32 s{s_m}, s2, 0x30003")
        a(f"s_and_b32 s23, s2, 1")
        a(f"s_lshl_b32 s23, s23, 3")
        a(f"s_add_u32 s{s_m}, s{s_m}, s23")

def wave_id(a, s_w, vtmp):
    a(f"v_lshrrev_b32 {vr(vtmp)}, 6, v0")
    a(f"v_readfirstlane_b32 s{s_w}, {vr(vtmp)}")
    a(f"v_and_b32 v0, 63, v0")

def descriptor(name, vgpr, sgpr=102):
    return f""".section .rodata,"a"
.p2align 6
.amdhsa_kernel {name}
  .amdhsa_next_free_vgpr {vgpr}
  .amdhsa_next_free_sgpr {sgpr}
  .amdhsa_accum_offset {((vgpr+3)//4)*4}
  .amdhsa_group_segment_fixed_size 0
  .amdhsa_kernarg_size 96
  .amdhsa_user_sgpr_count 2
  .amdhsa_user_sgpr_kernarg_segment_ptr 1
  .amdhsa_system_sgpr_workgroup_id_x 1
  .amdhsa_float_denorm_mode_32 3
.end_amdhsa_kernel
"""

def kernel_head(label):
    return f""".text
.globl {label}
.p2align 8
.type {label},@function
{label}:
"""

DIAG = 0xD00000
import os
DIAG_ON = os.environ.get("DIAG", "0") == "1"
NMARK = 8
CLK = "s_memtime" if os.environ.get("DIAGCYC", "0") == "1" else "s_memrealtime"
def diag_start(a):
    if not DIAG_ON: return
    a(f"{CLK} s[66:67]")
    a("s_memtime s[68:69]")
def diag_mark(a, idx):
    if not DIAG_ON: return
    a(f"{CLK} s[{70+2*idx}:{71+2*idx}]")
def diag_end(a, kidx, s_ws, s_wave):
    if not DIAG_ON: return
    a(f"{CLK} s[94:95]")
    a("s_memtime s[96:97]")
    a("s_waitcnt vmcnt(0) lgkmcnt(0)")
    a(f"{CLK} s[90:91]")
    a("s_waitcnt lgkmcnt(0)")
    a(f"s_lshl_b32 s98, s2, 4")
    a(f"s_add_u32 s98, s98, s{s_wave}")
    a(f"s_lshl_b32 s98, s98, 6")
    a(f"s_add_u32 s98, s98, {DIAG + kidx*0x40000}")
    a("s_sub_u32 s96, s96, s68")
    for i, r in enumerate((66, 67, 94, 96)): a(f"v_mov_b32 v{8+i}, s{r}")
    for i in range(8): a(f"v_mov_b32 v{12+i}, s{70+2*i}")
    a("v_mov_b32 v20, s90")
    a("v_mov_b32 v21, 0")
    a("v_mov_b32 v22, 0")
    a("v_mov_b32 v23, 0")
    a("v_mov_b32 v24, 0")
    for i in range(4):
        a(f"buffer_store_dwordx4 v[{8+4*i}:{11+4*i}], v24, {sr(s_ws,4)}, s98 offen offset:{16*i}")
```

```python
import os
from common import *
import phase0 as P
import attn as A

LABEL = NAME + "_kernel"
S_X, S_W, S_WS, S_WQ = P.S_X, P.S_W, P.S_WS, P.S_WQ
S_WAVE, S_GR, S_M, S_G = P.S_WAVE, P.S_GR, P.S_M, P.S_G
T0, T1, T2, T3 = P.S_T0, P.S_T1, P.S_T2, P.S_T3
S_GATE = 36
S_W2, S_WO, S_OUT, S_DBG = 48, 52, 56, 60
S_SPIN = 64
LDS_BYTES = 163840
LDS_FLAGS = LDS_BYTES - 64
RING_BASE = 131072
SPIN_MAX = 1 << 18
SWITCH_STEP = int(os.environ.get("SWITCH", "49"))
SC = "sc1"
EXP = set(os.environ.get("EXP", "").split(","))
SLOT, NSTAGE = P.SLOT, P.NSTAGE

_uid = [0]
def uid(p):
    _uid[0] += 1
    return f"{p}{_uid[0]}"

def spin_global(a, vaddr, vtmp, srd, soff, expect, sleep=2):
    L = uid("L_poll"); D = uid("L_pollx")
    a(f"s_mov_b32 s{S_SPIN}, {SPIN_MAX}")
    a.label(L)
    a(f"buffer_load_dword v{vtmp}, v{vaddr}, {sr(srd,4)}, {soff} offen {SC}")
    a("s_waitcnt vmcnt(0)")
    a(f"v_cmp_ne_u32 vcc, {expect}, v{vtmp}")
    a(f"s_cbranch_vccz {D}")
    a(f"s_sub_u32 s{S_SPIN}, s{S_SPIN}, 1")
    a(f"s_cmp_eq_u32 s{S_SPIN}, 0")
    a(f"s_cbranch_scc1 {D}")
    a(f"s_sleep {sleep}")
    a(f"s_branch {L}")
    a.label(D)

def spin_lds(a, vaddr, vtmp, off, expect):
    L = uid("L_lp"); D = uid("L_lpx")
    a(f"s_mov_b32 s{S_SPIN}, {SPIN_MAX}")
    a.label(L)
    a(f"ds_read_b32 v{vtmp}, v{vaddr} offset:{off}")
    a("s_waitcnt lgkmcnt(0)")
    a(f"v_cmp_gt_u32 vcc, {expect}, v{vtmp}")
    a(f"s_cbranch_vccz {D}")
    a(f"s_sub_u32 s{S_SPIN}, s{S_SPIN}, 1")
    a(f"s_cmp_eq_u32 s{S_SPIN}, 0")
    a(f"s_cbranch_scc1 {D}")
    a("s_sleep 1")
    a(f"s_branch {L}")
    a.label(D)

def one_lane(a): a("s_mov_b64 exec, 1")
def all_lanes(a): a("s_mov_b64 exec, -1")

def store_flag(a, soff_reg, vzero, vone):
    a(f"v_mov_b32 v{vzero}, 0")
    a(f"v_mov_b32 v{vone}, 1")
    one_lane(a)
    a(f"buffer_store_dword v{vone}, v{vzero}, {sr(S_WS,4)}, s{soff_reg} offen {SC}")
    all_lanes(a)

def lds_add(a, vaddr, vone, off):
    one_lane(a)
    a(f"ds_add_u32 v{vaddr}, v{vone} offset:{off}")
    all_lanes(a)

class Ring:
    def __init__(self, slot, nslot, qoff, woff): self.slot, self.nslot, self.qoff, self.woff = slot, nslot, qoff, woff
    @property
    def depth(self): return self.nslot - 1
RING_FFN = Ring(SLOT, 4, P.QOFF, P.WOFF)
RING_KV = Ring(24832, 6, 16384, 20480)
KV_WV = 2048 + 128
KV_GATE_LDS = 6 * 24832

def next_slot(a, s, regs, R):
    if s + 1 < NSTAGE:
        d = R.slot if (s + 1) % R.nslot else -(R.nslot - 1) * R.slot
        for r in regs: a(f"v_add_u32 v{r}, {hex(d & 0xffffffff)}, v{r}")

V_DX, V_DQ, V_DW = 12, 14, 15
def A_dma(a, s, ffn):
    R = RING_FFN if ffn else RING_KV
    slot = (s % R.nslot) * R.slot
    for i in range(2):
        a(f"s_add_u32 m0, s30, {slot + i*1024}")
        a(f"s_mov_b32 s{T0}, {s*128}")
        a(f"buffer_load_dwordx4 v{V_DX+i}, {sr(S_X,4)}, s{T0} offen lds")
    if ffn:
        for i in range(2):
            a(f"s_add_u32 m0, s30, {slot + P.WOFF + i*1024}")
            a(f"s_mov_b32 s{T0}, {(s*64 + 4*i)*3584}")
            a(f"buffer_load_dwordx4 v{V_DW}, {sr(S_W,4)}, s{T0} offen lds")
    a(f"s_add_u32 m0, s31, {slot}")
    a(f"s_mov_b32 s{T0}, {s*65536}")
    a("s_mov_b64 exec, s[32:33]")
    a(f"buffer_load_dwordx4 v{V_DQ}, {sr(S_WQ,4)}, s{T0} offen lds")
    a("s_mov_b64 exec, -1")

def A_prefetch(a, ffn):
    t0, t1 = 16, 17
    done = uid("L_pf")
    lx, lw, lq = uid("L_pfx"), uid("L_pfw"), uid("L_pfq")
    a(f"s_cmp_lt_u32 s{S_WAVE}, 2")
    a(f"s_cbranch_scc1 {lx}")
    if ffn:
        a(f"s_cmp_lt_u32 s{S_WAVE}, 6")
        a(f"s_cbranch_scc1 {lw}")
    a(f"s_cmp_eq_u32 s{S_WAVE}, 6")
    a(f"s_cbranch_scc1 {lq}")
    a.label(lx)
    a(f"s_and_b32 s{T0}, s{S_M}, 7")
    a(f"s_lshl_b32 s{T0}, s{T0}, 4")
    a(f"s_lshl_b32 s{T1}, s{S_GR}, 7")
    a(f"s_add_u32 s{T0}, s{T0}, s{T1}")
    a(f"s_and_b32 s{T1}, s{S_WAVE}, 1")
    a(f"s_lshl_b32 s{T1}, s{T1}, 3")
    a(f"s_add_u32 s{T0}, s{T0}, s{T1}")
    a(f"s_lshl_b32 s{T0}, s{T0}, 10")
    a(f"v_lshlrev_b32 v{t0}, 7, v0")
    a(f"buffer_load_dword v{t1}, v{t0}, {sr(S_X,4)}, s{T0} offen")
    a(f"s_branch {done}")
    if ffn:
        a.label(lw)
        a(f"s_and_b32 s{T0}, s{S_GR}, 3")
        a(f"s_lshl_b32 s{T0}, s{T0}, 7")
        a(f"s_sub_u32 s{T1}, s{S_WAVE}, 2")
        a(f"s_lshl_b32 s{T1}, s{T1}, 5")
        a(f"s_add_u32 s{T0}, s{T0}, s{T1}")
        a(f"s_mul_i32 s{T0}, s{T0}, 3584")
        a(f"s_lshl_b32 s{T1}, s{S_M}, 8")
        a(f"s_add_u32 s{T0}, s{T0}, s{T1}")
        a(f"v_lshrrev_b32 v{t0}, 1, v0")
        a(f"v_mul_u32_u24 v{t0}, 3584, v{t0}")
        a(f"v_and_b32 v{t1}, 1, v0")
        a(f"v_lshl_add_u32 v{t0}, v{t1}, 7, v{t0}")
        a(f"buffer_load_dword v{t1}, v{t0}, {sr(S_W,4)}, s{T0} offen")
        a(f"s_branch {done}")
    a.label(lq)
    a(f"s_and_b32 s{T0}, s{S_GR}, 3")
    a(f"s_lshl_b32 s{T0}, s{T0}, 7")
    a(f"s_and_b32 s{T1}, s{S_M}, 1")
    a(f"s_lshl_b32 s{T1}, s{T1}, 6")
    a(f"s_add_u32 s{T0}, s{T0}, s{T1}")
    a(f"s_lshl_b32 s{T0}, s{T0}, 10")
    a(f"s_lshl_b32 s{T1}, s{S_M}, 6")
    a(f"s_add_u32 s{T0}, s{T0}, s{T1}")
    a(f"v_lshlrev_b32 v{t0}, 10, v0")
    a(f"buffer_load_dword v{t1}, v{t0}, {sr(S_WQ,4)}, s{T0} offen")
    a.label(done)

def A_phase0(a, ffn):
    V_QA, V_QW, XQ, WQ = 8, 10, 40, 56
    R = RING_FFN if ffn else RING_KV
    per = 5 if ffn else 3
    if R.qoff != P.QOFF:
        a(f"v_subrev_u32 v{V_QW}, {P.QOFF - R.qoff}, v{V_QW}")
        a(f"s_sub_u32 s31, s31, {P.QOFF - R.qoff}")
    for i in range(4): a(f"v_mov_b32 v{20+i}, -1")
    a("v_lshlrev_b32 v24, 4, v0")
    a(f"buffer_store_dwordx4 v[20:23], v24, {sr(S_WS,4)}, s29 offen {SC}")
    for s in range(R.depth):
        A_dma(a, s, ffn)
        if s + 1 < R.depth: a("s_barrier")
    for s in range(NSTAGE):
        inflight = min(R.depth - 1, NSTAGE - 1 - s)
        a(f"s_waitcnt vmcnt({per * inflight}) lgkmcnt(0)")
        a("s_barrier")
        if s + R.depth < NSTAGE: A_dma(a, s + R.depth, ffn)
        for s2 in range(2 if "noAread" not in EXP else 0):
            a(f"ds_read_b64_tr_b16 {vr(WQ+4*s2,2)}, v{V_QW} offset:{s2*2048}")
            a(f"ds_read_b64_tr_b16 {vr(WQ+4*s2+2,2)}, v{V_QW} offset:{s2*2048+256}")
            for u in range(2):
                a(f"ds_read_b128 {vr(XQ+8*s2+4*u,4)}, v{V_QA+s2} offset:{u*2048}")
        for s2 in range(2):
            a(f"s_waitcnt lgkmcnt({4 if s2 == 0 else 0})")
            for u in range(2):
                c = "0" if (s == 0 and s2 == 0) else vr(P.A_ACC+4*u,4)
                a(f"v_mfma_f32_16x16x32_bf16 {vr(P.A_ACC+4*u,4)}, {vr(WQ+4*s2,4)}, {vr(XQ+8*s2+4*u,4)}, {c}")
        next_slot(a, s, (V_QA, V_QA+1, V_QW), R)
    a("s_barrier")

def A_common_setup(a):
    P.emit_A_setup(a)
    a(f"s_cmp_lt_u32 s{S_WAVE}, 4")
    a("s_cselect_b32 s32, -1, 0")
    a("s_cselect_b32 s33, 0, -1")
    a(f"v_mov_b32 v16, {LDS_FLAGS}")
    a("v_mov_b32 v17, 0")
    for o in (0, 4, 8, 12, 16): a(f"ds_write_b32 v16, v17 offset:{o}")
    a(f"s_and_b32 s{T0}, s{S_WAVE}, 3")
    a(f"s_lshl_b32 s{T1}, s{S_GR}, 2")
    a(f"s_add_u32 s{T0}, s{T0}, s{T1}")
    a(f"s_lshl_b32 s35, s{T0}, 7")
    a(f"s_add_u32 s35, s35, {GATE}")
    a(f"s_lshl_b32 s{T0}, s{T0}, 5")
    a(f"s_lshl_b32 s{T1}, s{S_M}, 1")
    a(f"s_add_u32 s{T0}, s{T0}, s{T1}")
    a(f"s_lshr_b32 s{T1}, s{S_WAVE}, 2")
    a(f"s_add_u32 s{T0}, s{T0}, s{T1}")
    a(f"s_lshl_b32 s{T0}, s{T0}, 10")
    a(f"s_add_u32 s29, s{T0}, {OF}")

def A_w1_setup(a):
    t0, t1, t3 = 16, 17, 19
    a(f"v_lshrrev_b32 v{t0}, 4, v0")
    a(f"v_lshlrev_b32 v{t1}, 2, v{t0}")
    a(f"v_and_b32 v{t3}, 15, v0")
    a(f"v_xor_b32 v{t1}, v{t1}, v{t3}")
    a(f"v_lshlrev_b32 v{t1}, 4, v{t1}")
    a(f"s_lshl_b32 s{T2}, s{S_WAVE}, 3")
    a(f"v_add_u32 v{t0}, s{T2}, v{t0}")
    a(f"v_mul_u32_u24 v{t0}, 3584, v{t0}")
    a(f"v_add_u32 v{V_DW}, v{t0}, v{t1}")
    a(f"s_lshl_b32 s{T2}, s{S_M}, 8")
    a(f"v_add_u32 v{V_DW}, s{T2}, v{V_DW}")

def attn_loop(a, label):
    def body(switch_at=None):
        for kb in range(A.UNROLL):
            if switch_at == kb: a("s_setprio 1")
            A.emit_step(a, kb)
        a(f"v_add_u32 v{A.KA_}, {A.UNROLL*2048}, v{A.KA_}")
        a(f"v_add_u32 v{A.VA_}, {A.UNROLL*2048}, v{A.VA_}")
    nA = SWITCH_STEP // A.UNROLL
    if "amarks" in EXP: diag_mark(a, 3)
    a(f"s_mov_b32 s{A.S_LOOP}, {nA}")
    a.label(f"{label}_loopA")
    body()
    a(f"s_cmp_eq_u32 s{A.S_LOOP}, {nA}")
    a(f"s_cbranch_scc1 {label}_landed")
    a.label(f"{label}_landed_ret")
    a(f"s_sub_u32 s{A.S_LOOP}, s{A.S_LOOP}, 1")
    a(f"s_cmp_lg_u32 s{A.S_LOOP}, 0")
    a(f"s_cbranch_scc1 {label}_loopA")
    if "amarks" in EXP: diag_mark(a, 6)
    a(f"s_mov_b32 s{A.S_LOOP}, {64 // A.UNROLL - nA}")
    a.label(f"{label}_loopB")
    body(SWITCH_STEP % A.UNROLL)
    a(f"s_sub_u32 s{A.S_LOOP}, s{A.S_LOOP}, 1")
    a(f"s_cmp_lg_u32 s{A.S_LOOP}, 0")
    a(f"s_cbranch_scc1 {label}_loopB")
    if "amarks" in EXP: diag_mark(a, 7)
    a(A.cv(63, 7))
    a("s_waitcnt lgkmcnt(0)")
    a(A.pv(63, 0)); a(A.pv(63, 1))
    a(f"v_subrev_u32 v{A.KA_}, {64*2048}, v{A.KA_}")
    a(f"v_subrev_u32 v{A.VA_}, {64*2048}, v{A.VA_}")

def attention(a, label):
    for i in range(16): a(f"v_mov_b32 v{A.CB+i}, 0")
    a(f"s_mov_b32 s{A.S_PASS}, 0")
    a.label(f"{label}_pass")
    A.emit_pass_init(a)
    attn_loop(a, label)
    a(f"s_cmp_lg_u32 s{A.S_PASS}, 0")
    a(f"s_cbranch_scc1 {label}_done")
    a("s_nop 7")
    TMP, OA = A.TMP, A.OA
    a(f"v_mov_b32 v{TMP}, {hexf(2.0**-64)}")
    a(f"v_mov_b32 v{TMP+1}, {hexf(2.0**64)}")
    a(f"v_cmp_ge_f32 s[44:45], v{OA+8}, v{TMP}")
    a(f"v_cmp_le_f32 s[46:47], v{OA+8}, v{TMP+1}")
    a(f"s_and_b64 s[44:45], s[44:45], s[46:47]")
    a(f"v_mov_b32 v{TMP}, 0x7f800000")
    for i in range(8):
        a(f"v_cmp_lt_f32 s[46:47], abs(v{OA+i}), v{TMP}")
        a(f"s_and_b64 s[44:45], s[44:45], s[46:47]")
    a(f"s_cmp_eq_u64 s[44:45], exec")
    a(f"s_cbranch_scc1 {label}_done")
    A.emit_maxpass(a, label)
    a(f"s_mov_b32 s{A.S_PASS}, 1")
    a(f"s_branch {label}_pass")
    a.label(f"{label}_landed")
    spin_lds(a, 3, 133, 4, 4)
    a(f"s_branch {label}_landed_ret")
    a.label(f"{label}_done")

CHUNK0 = 6
def kv_load(a):
    a(f"s_cmp_eq_u32 s{S_WAVE}, 0")
    a("s_cbranch_scc0 L_kvl_follow")
    a("v_and_b32 v20, 31, v0")
    a("v_lshlrev_b32 v20, 2, v20")
    spin_global(a, 20, 21, S_DBG, 0, 1, sleep=6)
    a("v_mov_b32 v22, 1")
    lds_add(a, 3, 22, 12)
    a("s_branch L_kvl_go")
    a.label("L_kvl_follow")
    spin_lds(a, 3, 21, 12, 1)
    a("v_mov_b32 v22, 1")
    a.label("L_kvl_go")
    diag_mark(a, 4)
    a("v_lshlrev_b32 v20, 4, v0")
    a(f"s_lshl_b32 s{T0}, s{S_WAVE}, 10")
    a(f"s_add_u32 s{T1}, s{T0}, {KVF}")
    sig = int(os.environ.get("SIG", "12"))
    for i in range(32):
        a(f"s_add_u32 m0, s{T0}, {i*4096}")
        a(f"s_add_u32 s{T2}, s{T1}, {i*4096}")
        a(f"buffer_load_dwordx4 v20, {sr(S_WS,4)}, s{T2} offen {SC} lds")
        if i + 1 == sig:
            a(f"s_waitcnt vmcnt({sig - CHUNK0})")
            diag_mark(a, 5)
            lds_add(a, 3, 22, 0)
    a("s_waitcnt vmcnt(0)")
    lds_add(a, 3, 22, 4)

def A_main(a):
    label = "L_att"
    a("v_mov_b32 v3, " + str(LDS_FLAGS))
    a(f"s_cmp_ge_u32 s{S_WAVE}, 4")
    a("s_cbranch_scc1 L_att_noload")
    kv_load(a)
    a.label("L_att_noload")
    a("s_nop 3")
    P.emit_A_qfrag(a, A.QR)
    A.emit_attn_setup(a)
    a(f"v_and_b32 v2, 31, v0")
    a(f"v_lshlrev_b32 v2, 2, v2")
    spin_lds(a, 3, 133, 0, 4)
    diag_mark(a, 1)
    a(f"buffer_load_dword v{A.GATEV}, v2, {sr(S_WS,4)}, s35 offen {SC}")
    a(f"s_cmp_lt_u32 s{S_WAVE}, 4")
    a("s_cbranch_scc1 L_att_old")
    a("s_setprio 2")
    a("s_branch L_att_go")
    a.label("L_att_old")
    a("s_setprio 1")
    a.label("L_att_go")
    attention(a, label)
    diag_mark(a, 2)
    a("s_waitcnt vmcnt(0)")
    A.emit_o_frag(a, A.TMP+4)
    for i in range(4): a(f"v_min_u32 v{A.TMP+4+i}, 0xfffffffe, v{A.TMP+4+i}")
    a(f"v_lshlrev_b32 v2, 4, v0")
    a(f"buffer_store_dwordx4 {vr(A.TMP+4,4)}, v2, {sr(S_WS,4)}, s29 offen {SC}")
    a("v_mov_b32 v9, 1")
    lds_add(a, 3, 9, 16)
    diag_end(a, 0, S_WS, S_WAVE)
    a("s_endpgm")

FB = [32, 48, 128, 144]
def G_reads(a, ks, buf):
    if "noGread" in EXP: return
    b = FB[buf]
    for t in range(2):
        a(f"ds_read_b64_tr_b16 {vr(b+4*t,2)}, v{12+t} offset:{ks*4096}")
        a(f"ds_read_b64_tr_b16 {vr(b+4*t+2,2)}, v{12+t} offset:{ks*4096+1024}")
    for t in range(2):
        a(f"ds_read_b128 {vr(b+8+4*t,4)}, v{8+ks} offset:{t*4096}")

def G_mfma(a, buf, first=False, which=(0, 1, 2, 3)):
    if "noGmfma" in EXP: return
    b = FB[buf]
    for q in which:
        nt, tt = q >> 1, q & 1
        acc = P.G_ACC + 16*q
        a(f"v_mfma_f32_32x32x16_bf16 {vr(acc,16)}, {vr(b+4*nt,4)}, {vr(b+8+4*tt,4)}, {'0' if first else vr(acc,16)}")

def G_prefetch(a):
    t0, t1, D = 16, 17, 160
    lx, lq, done = uid("L_pfx"), uid("L_pfq"), uid("L_pfd")
    a(f"s_and_b32 s{T0}, s{S_GR}, 3")
    a(f"s_lshl_b32 s{T0}, s{T0}, 7")
    a(f"s_lshl_b32 s{T1}, s{S_G}, 5")
    a(f"s_add_u32 s{T0}, s{T0}, s{T1}")
    a(f"s_mul_i32 s{T0}, s{T0}, 3584")
    a(f"s_lshl_b32 s{T1}, s{S_M}, 8")
    a(f"s_add_u32 s{T0}, s{T0}, s{T1}")
    a(f"v_lshrrev_b32 v{t0}, 1, v0")
    a(f"v_mul_u32_u24 v{t0}, 3584, v{t0}")
    a(f"v_and_b32 v{t1}, 1, v0")
    a(f"v_lshl_add_u32 v{t0}, v{t1}, 7, v{t0}")
    a(f"buffer_load_dword v{D}, v{t0}, {sr(S_W,4)}, s{T0} offen")
    a(f"s_cmp_lt_u32 s{S_G}, 2")
    a(f"s_cbranch_scc1 {lx}")
    a(f"s_cmp_eq_u32 s{S_G}, 2")
    a(f"s_cbranch_scc1 {lq}")
    a(f"v_lshlrev_b32 v{t0}, 21, v0")
    a(f"v_and_b32 v{t0}, 0xffffff, v{t0}")
    a(f"buffer_load_dword v{D+1}, v{t0}, {sr(S_WS,4)}, 0 offen")
    a(f"v_lshlrev_b32 v{t0}, 20, v0")
    a(f"v_and_b32 v{t0}, 0x1fffff, v{t0}")
    a(f"buffer_load_dword v{D+2}, v{t0}, {sr(S_W2,4)}, 0 offen")
    a(f"buffer_load_dword v{D+3}, v{t0}, {sr(S_WO,4)}, 0 offen")
    a(f"buffer_load_dword v{D+4}, v{t0}, {sr(S_OUT,4)}, 0 offen")
    a(f"s_branch {done}")
    a.label(lx)
    a(f"s_and_b32 s{T0}, s{S_M}, 7")
    a(f"s_lshl_b32 s{T0}, s{T0}, 4")
    a(f"s_lshl_b32 s{T1}, s{S_GR}, 7")
    a(f"s_add_u32 s{T0}, s{T0}, s{T1}")
    a(f"s_lshl_b32 s{T1}, s{S_G}, 3")
    a(f"s_add_u32 s{T0}, s{T0}, s{T1}")
    a(f"s_lshl_b32 s{T0}, s{T0}, 10")
    a(f"v_lshlrev_b32 v{t0}, 7, v0")
    a(f"buffer_load_dword v{D+1}, v{t0}, {sr(S_X,4)}, s{T0} offen")
    a(f"s_branch {done}")
    a.label(lq)
    a(f"s_and_b32 s{T0}, s{S_GR}, 3")
    a(f"s_lshl_b32 s{T0}, s{T0}, 7")
    a(f"s_and_b32 s{T1}, s{S_M}, 1")
    a(f"s_lshl_b32 s{T1}, s{T1}, 6")
    a(f"s_add_u32 s{T0}, s{T0}, s{T1}")
    a(f"s_lshl_b32 s{T0}, s{T0}, 10")
    a(f"s_lshl_b32 s{T1}, s{S_M}, 6")
    a(f"s_add_u32 s{T0}, s{T0}, s{T1}")
    a(f"v_lshlrev_b32 v{t0}, 10, v0")
    a(f"buffer_load_dword v{D+1}, v{t0}, {sr(S_WQ,4)}, s{T0} offen")
    a.label(done)

def G_ffn1(a):
    a("s_barrier")
    P.emit_G_setup(a)
    a("s_setprio 3")
    a("s_barrier")
    if "pf" in EXP: G_prefetch(a)
    for s in range(NSTAGE):
        a("s_waitcnt lgkmcnt(0)")
        a("s_barrier")
        if s == 0: diag_mark(a, 0)
        G_reads(a, 0, 0)
        G_reads(a, 1, 1)
        if s > 0:
            G_mfma(a, 2); G_mfma(a, 3)
        a("s_waitcnt lgkmcnt(6)")
        G_reads(a, 2, 2)
        G_mfma(a, 0, s == 0, (0, 1))
        a("s_waitcnt lgkmcnt(6)")
        G_reads(a, 3, 3)
        G_mfma(a, 0, s == 0, (2, 3))
        G_mfma(a, 1)
        next_slot(a, s, (8, 9, 10, 11, 12, 13), RING_FFN)
    a("s_waitcnt lgkmcnt(0)")
    a("s_barrier")
    diag_mark(a, 1)
    G_mfma(a, 2); G_mfma(a, 3)

def silu_tile(a, idx):
    acc = P.G_ACC + 16*idx
    tmp = 32 if idx % 2 == 0 else 48
    for i in range(16): a(f"v_mul_f32 v{tmp+i}, s{T2}, v{acc+i}")
    for i in range(16): a(f"v_exp_f32 v{tmp+i}, v{tmp+i}")
    for i in range(16): a(f"v_add_f32 v{tmp+i}, 1.0, v{tmp+i}")
    for i in range(16): a(f"v_rcp_f32 v{tmp+i}, v{tmp+i}")
    for i in range(16): a(f"v_mul_f32 v{tmp+i}, v{acc+i}, v{tmp+i}")
    for i in range(8): a(f"v_cvt_pk_bf16_f32 v{acc+i}, v{tmp+2*i}, v{tmp+2*i+1}")

def silu_store(a, idx):
    nt, tt = idx >> 1, idx & 1
    acc = P.G_ACC + 16*idx
    for hf in range(2):
        off = (tt*112 + 2*nt + hf) * 1024
        a(f"s_add_u32 s{T1}, s{T0}, {off}")
        a(f"buffer_store_dwordx4 {vr(acc+4*hf,4)}, v8, {sr(S_WS,4)}, s{T1} offen {SC}")

def G_silu(a):
    a(f"v_lshlrev_b32 v8, 4, v0")
    a(f"s_and_b32 s{T0}, s{S_G}, 1")
    a(f"s_lshl_b32 s{T0}, s{T0}, 1")
    a(f"s_lshl_b32 s{T1}, s{S_GR}, 2")
    a(f"s_add_u32 s{T0}, s{T0}, s{T1}")
    a(f"s_mul_i32 s{T0}, s{T0}, 112")
    a(f"s_lshl_b32 s{T1}, s{S_M}, 3")
    a(f"s_add_u32 s{T0}, s{T0}, s{T1}")
    a(f"s_lshr_b32 s{T1}, s{S_G}, 1")
    a(f"s_lshl_b32 s{T1}, s{T1}, 2")
    a(f"s_add_u32 s{T0}, s{T0}, s{T1}")
    a(f"s_lshl_b32 s{T0}, s{T0}, 10")
    a(f"s_add_u32 s{T0}, s{T0}, {HF}")
    a(f"s_mov_b32 s{T2}, {hexf(-LOG2E)}")
    for idx in range(4): silu_tile(a, idx)
    diag_mark(a, 2)
    a(f"s_mov_b32 s65, s{T0}")
    t_setup(a)
    a("s_setprio 0")
    a(f"v_mov_b32 v21, {LDS_FLAGS}")
    spin_lds(a, 21, 22, 4, 4)
    a(f"s_mov_b32 s{T0}, s65")
    for idx in range(4): silu_store(a, idx)
    for j in range(DEPTH): t_issue_w(a, j)
    a("s_waitcnt vmcnt(0)")
    a(f"s_lshl_b32 s{T0}, s{S_GR}, 12")
    a(f"s_lshl_b32 s{T1}, s{S_M}, 7")
    a(f"s_add_u32 s{T0}, s{T0}, s{T1}")
    a(f"s_lshl_b32 s{T1}, s{S_G}, 2")
    a(f"s_add_u32 s{T0}, s{T0}, s{T1}")
    a(f"s_add_u32 s{T0}, s{T0}, {FLAGS}")
    store_flag(a, T0, 2, 3)

def KV_dma(a, s):
    R = RING_KV
    a(f"s_add_u32 m0, s30, {(s % R.nslot) * R.slot}")
    a(f"s_mov_b32 s{T0}, {s*2048}")
    a(f"buffer_load_dwordx4 v14, {sr(S_W,4)}, s{T0} offen lds")

def G_kv(a):
    R = RING_KV
    a(f"s_lshl_b32 s{T1}, s{S_GR}, 12")
    a(f"s_sub_u32 s{T0}, s{S_M}, 14")
    a(f"s_lshl_b32 s{T0}, s{T0}, 11")
    a(f"s_add_u32 s{T0}, s{T0}, s{T1}")
    a(f"s_lshl_b32 s{T1}, s{S_G}, 9")
    a(f"s_add_u32 s{T0}, s{T0}, s{T1}")
    a(f"s_add_u32 s{T0}, s{T0}, {FLAGS}")
    a("v_lshlrev_b32 v16, 3, v0")
    a("v_mov_b32 v18, 0")
    a("v_mov_b32 v19, 0")
    a(f"buffer_store_dwordx2 v[18:19], v16, {sr(S_WS,4)}, s{T0} offen {SC}")
    P.emit_KV_setup(a)
    a(f"v_subrev_u32 v10, {P.WOFF - R.woff}, v10")
    a(f"s_sub_u32 s30, s30, {P.WOFF - R.woff}")
    a(f"v_add_u32 v11, {KV_GATE_LDS - P.GATE_LDS}, v11")
    X, WK, WV, GW = 32, 40, 48, 56
    a(f"v_lshlrev_b32 v15, 4, v0")
    a(f"s_mov_b32 m0, {KV_GATE_LDS}")
    a(f"s_mov_b32 s{T0}, 0")
    a(f"buffer_load_dwordx4 v15, {sr(S_GATE,4)}, s{T0} offen lds")
    for s in range(R.depth):
        KV_dma(a, s)
        if s + 1 < R.depth: a("s_barrier")
    a(f"buffer_load_dword v160, v16, {sr(S_DBG,4)}, 0 offen")
    for s in range(NSTAGE):
        inflight = min(R.depth - 1, NSTAGE - 1 - s)
        a(f"s_waitcnt vmcnt({inflight + (1 if s < R.depth else 0)}) lgkmcnt(0)")
        a("s_barrier")
        if s == 0: diag_mark(a, 0)
        if s + R.depth < NSTAGE: KV_dma(a, s + R.depth)
        for s2 in range(2):
            a(f"ds_read_b128 {vr(X+4*s2,4)}, v{8+s2}")
            a(f"ds_read_b64_tr_b16 {vr(WK+4*s2,2)}, v10 offset:{s2*1024}")
            a(f"ds_read_b64_tr_b16 {vr(WK+4*s2+2,2)}, v10 offset:{s2*1024+128}")
            a(f"ds_read_b64_tr_b16 {vr(WV+4*s2,2)}, v10 offset:{KV_WV+s2*1024}")
            a(f"ds_read_b64_tr_b16 {vr(WV+4*s2+2,2)}, v10 offset:{KV_WV+s2*1024+128}")
            a(f"ds_read_b128 {vr(GW+4*s2,4)}, v11 offset:{s*128+s2*64}")
        a("s_waitcnt lgkmcnt(0)")
        for s2 in range(2):
            z = (s == 0 and s2 == 0)
            K = P.KV_ACC
            a(f"v_mfma_f32_16x16x32_bf16 {vr(K,4)}, {vr(WK+4*s2,4)}, {vr(X+4*s2,4)}, {'0' if z else vr(K,4)}")
            a(f"v_mfma_f32_16x16x32_bf16 {vr(K+4,4)}, {vr(X+4*s2,4)}, {vr(WV+4*s2,4)}, {'0' if z else vr(K+4,4)}")
            a(f"v_mfma_f32_16x16x32_bf16 {vr(K+8,4)}, {vr(GW+4*s2,4)}, {vr(X+4*s2,4)}, {'0' if z else vr(K+8,4)}")
        next_slot(a, s, (8, 9, 10), R)
    diag_mark(a, 1)
    P.emit_KV_store(a, SC)
    a("s_waitcnt vmcnt(0)")
    diag_mark(a, 2)
    a(f"v_mov_b32 v21, {LDS_FLAGS}")
    a("v_mov_b32 v22, 1")
    one_lane(a)
    a("ds_add_rtn_u32 v23, v21, v22 offset:8")
    a("s_waitcnt lgkmcnt(0)")
    a("v_readfirstlane_b32 s24, v23")
    all_lanes(a)
    a("s_cmp_eq_u32 s24, 3")
    a("s_cbranch_scc0 L_kv_nosig")
    a(f"s_sub_u32 s{T0}, s{S_M}, 14")
    a(f"s_lshl_b32 s{T1}, s{S_GR}, 1")
    a(f"s_add_u32 s{T0}, s{T0}, s{T1}")
    a(f"s_lshl_b32 s{T0}, s{T0}, 2")
    a("v_mov_b32 v8, 0")
    one_lane(a)
    a(f"buffer_store_dword v22, v8, {sr(S_DBG,4)}, s{T0} offen {SC}")
    all_lanes(a)
    a.label("L_kv_nosig")
    a("s_barrier")
    if "p0only" in EXP: return
    t_setup(a)
    a(f"v_mov_b32 v21, {LDS_FLAGS}")
    spin_lds(a, 21, 22, 4, 4)
    for j in range(DEPTH): t_issue_w(a, j)

ACC, AB, BB = 32, [16, 24], [96 + 8*i for i in range(8)]
V_LIN, V_DW2, V_A0, V_A1, V_G0, V_G1 = 8, 9, 10, 11, 12, 13
V_PF = 160
V_GA, V_FL = 14, 15
DEPTH, STAGE2 = 3, 2048
S_RING, S_HB, S_OB, S_WB2, S_WBO, S_FL = 30, 31, 32, 33, 34, 35

def t_setup(a):
    t0, t1, t2 = 2, 3, 4
    a(f"v_lshlrev_b32 v{V_LIN}, 4, v0")
    a(f"v_lshrrev_b32 v{t0}, 3, v0")
    a(f"v_bfe_u32 v{t1}, v0, 4, 1")
    a(f"v_lshlrev_b32 v{t1}, 2, v{t1}")
    a(f"v_and_b32 v{t2}, 7, v0")
    a(f"v_xor_b32 v{t1}, v{t1}, v{t2}")
    a(f"v_lshlrev_b32 v{t1}, 4, v{t1}")
    a(f"v_lshl_add_u32 v{V_DW2}, v{t0}, 10, v{t1}")
    a(f"s_lshr_b32 s{T0}, s{S_M}, 1")
    a(f"s_lshl_b32 s{T3}, s{T0}, 7")
    a(f"v_add_u32 v{V_DW2}, s{T3}, v{V_DW2}")
    a(f"s_mul_i32 s{S_RING}, s{S_G}, {DEPTH*STAGE2}")
    a(f"s_add_u32 s{S_RING}, s{S_RING}, {RING_BASE}")
    a(f"v_bfe_u32 v{t0}, v0, 2, 2")
    a(f"v_lshrrev_b32 v{t1}, 5, v0")
    a(f"v_lshl_add_u32 v{t1}, v{t1}, 2, v{t0}")
    a(f"v_lshlrev_b32 v{V_A0}, 7, v{t1}")
    a(f"v_lshrrev_b32 v{t0}, 1, v{t0}")
    a(f"v_lshl_add_u32 v{V_A0}, v{t0}, 6, v{V_A0}")
    a(f"v_bfe_u32 v{t1}, v0, 4, 1")
    a(f"v_lshl_add_u32 v{V_A0}, v{t1}, 5, v{V_A0}")
    a(f"v_bfe_u32 v{t1}, v0, 1, 1")
    a(f"v_lshl_add_u32 v{V_A0}, v{t1}, 4, v{V_A0}")
    a(f"v_and_b32 v{t1}, 1, v0")
    a(f"v_lshl_add_u32 v{V_A0}, v{t1}, 3, v{V_A0}")
    a(f"v_add_u32 v{V_A0}, s{S_RING}, v{V_A0}")
    a(f"v_xor_b32 v{V_A1}, 64, v{V_A0}")
    a(f"s_and_b32 s{T0}, s{S_M}, 1")
    a(f"s_lshl_b32 s{T0}, s{T0}, 1")
    a(f"s_lshl_b32 s{T1}, s{S_GR}, 2")
    a(f"s_add_u32 s{T0}, s{T0}, s{T1}")
    a(f"s_mul_i32 s{T1}, s{T0}, 112")
    a(f"s_mul_i32 s{T2}, s{S_G}, 28")
    a(f"s_add_u32 s{T1}, s{T1}, s{T2}")
    a(f"s_lshl_b32 s{S_HB}, s{T1}, 10")
    a(f"s_add_u32 s{S_HB}, s{S_HB}, {HF}")
    a(f"s_lshl_b32 s{T1}, s{T0}, 5")
    a(f"s_lshl_b32 s{T2}, s{S_G}, 3")
    a(f"s_add_u32 s{T1}, s{T1}, s{T2}")
    a(f"s_lshl_b32 s{S_OB}, s{T1}, 10")
    a(f"s_add_u32 s{S_OB}, s{S_OB}, {OF}")
    a(f"s_mul_i32 s{S_WB2}, s{S_G}, {28*16*1024}")
    a(f"s_lshl_b32 s{S_WBO}, s{S_G}, 17")
    a(f"s_lshl_b32 s{T1}, s{T0}, 7")
    a(f"s_add_u32 s29, s{T1}, {GATE}")
    a(f"v_and_b32 v{t0}, 31, v0")
    a(f"v_lshlrev_b32 v{V_GA}, 2, v{t0}")
    a(f"v_lshrrev_b32 v{t1}, 1, v{t0}")
    a(f"v_min_u32 v{t1}, 13, v{t1}")
    a(f"v_and_b32 v{t2}, 1, v0")
    a(f"v_lshlrev_b32 v{t2}, 3, v{t2}")
    a(f"v_lshl_add_u32 v{V_FL}, v{t1}, 7, v{t2}")
    a(f"s_and_b32 s{T1}, s{S_M}, 1")
    a(f"s_lshl_b32 s{T1}, s{T1}, 2")
    a(f"s_lshl_b32 s{T2}, s{S_GR}, 12")
    a(f"s_add_u32 s{T1}, s{T1}, s{T2}")
    a(f"s_add_u32 s{S_FL}, s{T1}, {FLAGS}")

def t_issue_w(a, j):
    slot = j % DEPTH
    which_h = j < 28
    loc = j if which_h else j - 28
    wsrd, wbase = (S_W2, S_WB2) if which_h else (S_WO, S_WBO)
    for i in range(2):
        a(f"s_add_u32 m0, s{S_RING}, {slot*STAGE2 + i*1024}")
        a(f"s_add_u32 s{T2}, s{wbase}, {(loc*16 + 8*i)*1024}")
        a(f"buffer_load_dwordx4 v{V_DW2}, {sr(wsrd,4)}, s{T2} offen lds")
def bslot(j): return (j % DEPTH) if j < 28 else (j - 28)
def t_issue_a(a, j):
    which_h = j < 28
    loc = j if which_h else j - 28
    abase, astride = (S_HB, 112*1024) if which_h else (S_OB, 32*1024)
    for tt in range(2):
        a(f"s_add_u32 s{T2}, s{abase}, {loc*1024 + tt*astride}")
        a(f"buffer_load_dwordx4 {vr(BB[bslot(j)]+4*tt,4)}, v{V_LIN}, {sr(S_WS,4)}, s{T2} offen {SC}")
def t_reads(a, j):
    slot = j % DEPTH; buf = j & 1
    for nt in range(2):
        w = AB[buf] + 4*nt
        a(f"ds_read_b64_tr_b16 {vr(w,2)}, v{V_A0+nt} offset:{slot*STAGE2}")
        a(f"ds_read_b64_tr_b16 {vr(w+2,2)}, v{V_A0+nt} offset:{slot*STAGE2+1024}")
def t_mfmas(a, j, first=False):
    buf = j & 1
    for nt in range(2):
        for tt in range(2):
            acc = ACC + 16*(2*nt + tt)
            a(f"v_mfma_f32_32x32x16_bf16 {vr(acc,16)}, {vr(AB[buf]+4*nt,4)}, {vr(BB[bslot(j)]+4*tt,4)}, {'0' if first else vr(acc,16)}")

def t_ffn2(a):
    a(f"s_waitcnt vmcnt({2*(DEPTH-1)})")
    t_reads(a, 0)
    for j in range(28):
        rem = 27 - j
        if rem > 0:
            n = 2*(DEPTH-2) if j == 0 else 4 * (min(DEPTH - 1, rem) - 1)
            a(f"s_waitcnt vmcnt({n})")
            t_reads(a, j+1)
            a("s_waitcnt lgkmcnt(4)")
        else:
            a("s_waitcnt lgkmcnt(0)")
        t_mfmas(a, j, first=(j == 0))
        if j + DEPTH < 28:
            t_issue_w(a, j + DEPTH); t_issue_a(a, j + DEPTH)

def t_wo(a):
    t_reads(a, 28); t_reads(a, 29)
    a("s_waitcnt lgkmcnt(0)")
    t_issue_w(a, 31); t_issue_w(a, 32)
    a(f"v_mov_b32 v2, {LDS_FLAGS}")
    L, D = uid("L_ad"), uid("L_adx")
    a(f"s_mov_b32 s{S_SPIN}, {SPIN_MAX}")
    a.label(L)
    a(f"ds_read_b32 v3, v2 offset:16")
    a("s_waitcnt lgkmcnt(0)")
    a(f"v_cmp_gt_u32 vcc, 8, v3")
    a(f"s_cbranch_vccz {D}")
    a(f"s_sub_u32 s{S_SPIN}, s{S_SPIN}, 1")
    a(f"s_cmp_eq_u32 s{S_SPIN}, 0")
    a(f"s_cbranch_scc1 {D}")
    a("s_sleep 4")
    a(f"s_branch {L}")
    a.label(D)
    diag_mark(a, 5)
    a("s_setprio 3")
    L, D = uid("L_of"), uid("L_ofx")
    a(f"s_mov_b32 s{S_SPIN}, {SPIN_MAX >> 2}")
    a.label(L)
    for j in range(28, 36): t_issue_a(a, j)
    a("s_waitcnt vmcnt(8)")
    B0 = BB[0]
    a(f"v_max3_u32 v2, v{B0}, v{B0+1}, v{B0+2}")
    for i in range(3, 31, 2): a(f"v_max3_u32 v2, v2, v{B0+i}, v{B0+i+1}")
    a(f"v_max_u32 v2, v2, v{B0+31}")
    a("s_waitcnt vmcnt(0)")
    for i in range(32, 64, 2): a(f"v_max3_u32 v2, v2, v{B0+i}, v{B0+i+1}")
    a(f"v_cmp_eq_u32 vcc, -1, v2")
    a(f"s_cbranch_vccz {D}")
    a(f"s_sub_u32 s{S_SPIN}, s{S_SPIN}, 1")
    a(f"s_cmp_eq_u32 s{S_SPIN}, 0")
    a(f"s_cbranch_scc0 {L}")
    a.label(D)
    diag_mark(a, 6)
    t_mfmas(a, 28)
    t_reads(a, 30)
    t_mfmas(a, 29)
    a("s_waitcnt lgkmcnt(0)")
    t_issue_w(a, 33)
    t_reads(a, 31)
    t_mfmas(a, 30)
    a("s_waitcnt lgkmcnt(0)")
    t_issue_w(a, 34)
    t_reads(a, 32)
    t_mfmas(a, 31)
    a("s_waitcnt lgkmcnt(0)")
    t_issue_w(a, 35)
    a("s_waitcnt vmcnt(4)")
    t_reads(a, 33)
    t_mfmas(a, 32)
    a("s_waitcnt vmcnt(2) lgkmcnt(0)")
    t_reads(a, 34)
    t_mfmas(a, 33)
    a("s_waitcnt vmcnt(0) lgkmcnt(0)")
    t_reads(a, 35)
    t_mfmas(a, 34)
    a("s_waitcnt lgkmcnt(0)")
    t_mfmas(a, 35)

def t_reduce_store(a):
    t0, t1, t2, t3 = 2, 3, 4, 5
    a(f"v_and_b32 v{t0}, 31, v0")
    a(f"v_lshrrev_b32 v{t1}, 5, v0")
    a(f"v_and_b32 v{t2}, 15, v0")
    a(f"v_xor_b32 v{t1}, v{t1}, v{t2}")
    a(f"v_lshlrev_b32 v{t1}, 4, v{t1}")
    a(f"v_lshl_add_u32 v{t0}, v{t0}, 8, v{t1}")
    a(f"s_lshl_b32 s{T0}, s{S_G}, 14")
    a(f"v_add_u32 v{t0}, s{T0}, v{t0}")
    for nt in range(2):
        for q in range(4):
            a(f"v_xor_b32 v{6+(q&1)}, {(8*nt + 2*q)*16}, v{t0}")
            for tt in range(2):
                acc = ACC + 16*(2*nt + tt) + 4*q
                a(f"ds_write_b128 v{6+(q&1)}, {vr(acc,4)} offset:{tt*8192}")
    a(f"v_lshrrev_b32 v{t0}, 3, v0")
    a(f"v_and_b32 v{t1}, 7, v0")
    a(f"v_lshlrev_b32 v{t1}, 1, v{t1}")
    a(f"s_lshl_b32 s{T0}, s{S_G}, 4")
    for i in range(2):
        a(f"v_add_u32 v{t2}, {8*i}, v{t0}")
        a(f"v_xor_b32 v{t3}, v{t1}, v{t2}")
        a(f"v_lshlrev_b32 v{t3}, 4, v{t3}")
        a(f"v_add_u32 v{t2}, s{T0}, v{t2}")
        a(f"v_lshl_add_u32 v{12+i}, v{t2}, 8, v{t3}")
        a(f"v_xor_b32 v{14+i}, 16, v{12+i}")
    a(f"s_and_b32 s{T1}, s{S_M}, 1")
    a(f"s_lshl_b32 s{T1}, s{T1}, 6")
    a(f"s_lshl_b32 s{T2}, s{S_GR}, 7")
    a(f"s_add_u32 s{T1}, s{T1}, s{T2}")
    a(f"s_add_u32 s{T1}, s{T1}, s{T0}")
    a(f"v_add_u32 v{t2}, s{T1}, v{t0}")
    a(f"v_lshlrev_b32 v{t2}, 10, v{t2}")
    a(f"v_and_b32 v{t1}, 7, v0")
    a(f"v_lshl_add_u32 v{t2}, v{t1}, 4, v{t2}")
    a(f"s_lshr_b32 s{T1}, s{S_M}, 1")
    a(f"s_lshl_b32 s{T1}, s{T1}, 7")
    a("s_waitcnt lgkmcnt(0)")
    a("s_barrier")
    R = 96
    for i in range(2):
        for w in range(4):
            a(f"ds_read_b128 {vr(R+32*i+8*w,4)}, v{12+i} offset:{w*16384}")
            a(f"ds_read_b128 {vr(R+32*i+8*w+4,4)}, v{14+i} offset:{w*16384}")
    for i in range(2):
        a(f"s_waitcnt lgkmcnt({8 if i == 0 else 0})")
        b = R + 32*i
        for e in range(8):
            a(f"v_add_f32 v{b+e}, v{b+e}, v{b+8+e}")
            a(f"v_add_f32 v{b+16+e}, v{b+16+e}, v{b+24+e}")
        for e in range(8):
            a(f"v_add_f32 v{b+e}, v{b+e}, v{b+16+e}")
        for e in range(4):
            a(f"v_cvt_pk_bf16_f32 v{16+4*i+e}, v{b+2*e}, v{b+2*e+1}")
        a(f"s_add_u32 s{T2}, s{T1}, {i*8192}")
        a(f"buffer_store_dwordx4 {vr(16+4*i,4)}, v{t2}, {sr(S_OUT,4)}, s{T2} offen")

def G_tail(a):
    spin_global(a, V_FL, 3, S_WS, f"s{S_FL}", 1, sleep=8)
    diag_mark(a, 3)
    a(f"buffer_load_dword v{V_G0}, v{V_GA}, {sr(S_WS,4)}, s29 offen {SC}")
    a(f"buffer_load_dword v{V_G1}, v{V_GA}, {sr(S_WS,4)}, s29 offen offset:128 {SC}")
    for j in range(DEPTH): t_issue_a(a, j)
    if "noffn2" not in EXP: t_ffn2(a)
    else: a("s_waitcnt vmcnt(0)")
    diag_mark(a, 4)
    for j in range(28, 28 + DEPTH): t_issue_w(a, j)
    a(f"v_sub_f32 v2, 1.0, v{V_G0}")
    a(f"v_sub_f32 v3, 1.0, v{V_G1}")
    for q in range(4):
        for i in range(16): a(f"v_mul_f32 v{ACC+16*q+i}, v{ACC+16*q+i}, v{2+(q&1)}")
    a("s_waitcnt vmcnt(0)")
    t_wo(a)
    a("s_barrier")
    diag_mark(a, 7)
    t_reduce_store(a)

def build():
    a = Asm()
    diag_start(a)
    wg_decode(a, S_GR, S_M, "L_exit")
    srd(a, S_X, 'x', 2048*1024)
    srd(a, S_WQ, 'wq', 512*1024)
    srd(a, S_WS, 'ws', WS_BYTES)
    srd(a, S_DBG, 'dbg', 256)
    srd(a, S_W, 'w1', 512*3584)
    wave_id(a, S_WAVE, 1)
    a(f"s_cmp_ge_u32 s{S_WAVE}, 8")
    a("s_cbranch_scc1 L_G")
    a(f"s_cmp_ge_u32 s{S_M}, 14")
    a("s_cbranch_scc1 L_A_kv")
    a("s_waitcnt lgkmcnt(0)")
    A_common_setup(a)
    A_w1_setup(a)
    A_phase0(a, True)
    a("s_branch L_A_main")
    a.label("L_A_kv")
    a("s_waitcnt lgkmcnt(0)")
    A_common_setup(a)
    A_phase0(a, False)
    a.label("L_A_main")
    diag_mark(a, 0)
    if "p0only" in EXP:
        diag_end(a, 0, S_WS, S_WAVE)
        a("s_endpgm")
    A_main(a)
    a.label("L_G")
    a(f"s_sub_u32 s{S_G}, s{S_WAVE}, 8")
    srd(a, S_W2, 'w2', 1792*1024)
    srd(a, S_WO, 'wo', 512*1024)
    srd(a, S_OUT, 'out', 2048*1024)
    a(f"s_cmp_ge_u32 s{S_M}, 14")
    a("s_cbranch_scc1 L_KV")
    a("s_waitcnt lgkmcnt(0)")
    G_ffn1(a)
    if "p0only" in EXP:
        diag_end(a, 0, S_WS, S_WAVE)
        a("s_endpgm")
    G_silu(a)
    a("s_branch L_G2")
    a.label("L_KV")
    a(f"s_load_dwordx2 s[32:33], s[0:1], {KA['wk']}")
    a(f"s_load_dwordx2 s[34:35], s[0:1], {KA['wv']}")
    srd(a, S_GATE, 'gate', 1024)
    a("s_waitcnt lgkmcnt(0)")
    a(f"s_cmp_lt_u32 s{S_G}, 2")
    a(f"s_cselect_b32 s{S_W}, s32, s34")
    a(f"s_cselect_b32 s{S_W+1}, s33, s35")
    a(f"s_mov_b32 s{S_W+2}, {512*32}")
    a(f"s_mov_b32 s{S_W+3}, 0x00020000")
    G_kv(a)
    if "p0only" in EXP:
        diag_end(a, 0, S_WS, S_WAVE)
        a("s_endpgm")
    a.label("L_G2")
    if "noG2" in EXP:
        diag_end(a, 0, S_WS, S_WAVE)
        a("s_endpgm")
    G_tail(a)
    diag_end(a, 0, S_WS, S_WAVE)
    a.label("L_exit")
    a("s_endpgm")
    hdr = open('cdna_kernels/' + NAME + '.s.ref').read().split('; Override launch')[0]
    s = hdr + f"; @launch grid=(256,1,1) block=(768,1,1) lds={LDS_BYTES}\n"
    s += '.amdgcn_target "amdgcn-amd-amdhsa--gfx950"\n'
    s += kernel_head(LABEL) + a.render() + descriptor(LABEL, 168)
    return s

if __name__ == "__main__":
    import sys
    out = sys.argv[1] if len(sys.argv) > 1 else 'v5.s'
    s = build()
    open(out, 'w').write(s)
    print("wrote", out, len(s))
```
